```python
import torch

def _softmax(x, axis=-1):
    return torch.softmax(x, dim=axis)
def _gelu(x):
    return torch.nn.functional.gelu(x, approximate="tanh")
def _silu(x):
    return torch.nn.functional.silu(x)
def _sigmoid(x):
    return torch.sigmoid(x)
def _layernorm(x, axis=-1, eps=1e-5):
    m = x.mean(dim=axis, keepdim=True)
    v = x.var(dim=axis, keepdim=True, unbiased=False)
    return (x - m) / torch.sqrt(v + eps)
def _scatter_add(tgt, idx, src, axis=0):
    return tgt.clone().index_add_(axis, idx, src)
def _segment_sum(src, seg, n):
    out = torch.zeros((n,) + src.shape[1:], dtype=src.dtype)
    return out.index_add_(0, seg, src)
def _pad(x, pw):
    flat = tuple(v for pair in reversed(pw) for v in pair)
    return torch.nn.functional.pad(x, flat)

kernel_name = 'sequential_preLN__spectral_gfnet__moe_arch_mod__prompt'

def setup_inputs():

    _w = (lambda a: (lambda t: t.to(torch.bfloat16) if t.is_floating_point() else t)(torch.as_tensor(a)))
    def _A_setup():
        B, S, D = 1, 2048, 576
        Df = D // 2 + 1
        return {
            "x": _w((lambda *s: torch.randn(*s, dtype=torch.bfloat16) * 0.05)(B, S, D)),
            "w_r": _w((lambda *s: torch.randn(*s, dtype=torch.bfloat16) * 0.4)(S, Df) * 0.02),
            "w_i": _w((lambda *s: torch.randn(*s, dtype=torch.bfloat16) * 0.4)(S, Df) * 0.02),
        }
    _A_in = _A_setup()

    def _B_setup():
        B, S, D, F, C = 1, 2048, 576, 4608, 2
        return {
            "x": _w((lambda *s: torch.randn(*s, dtype=torch.bfloat16) * 0.05)(B, S, D)),
            "w_r": _w((lambda *s: torch.randn(*s, dtype=torch.bfloat16) * 0.05)(D)),
            "w_gate": _w((lambda *s: torch.randn(*s, dtype=torch.bfloat16) * 0.05)(D, F)),
            "w_up": _w((lambda *s: torch.randn(*s, dtype=torch.bfloat16) * 0.05)(D, F)),
            "w_down": _w((lambda *s: torch.randn(*s, dtype=torch.bfloat16) * 0.05)(F, D)),
        }
    _B_in = _B_setup()

    return {
        "A_x": _A_in["x"],
        "A_w_r": _A_in["w_r"],
        "A_w_i": _A_in["w_i"],
        "B_x": _B_in["x"],
        "B_w_r": _B_in["w_r"],
        "B_w_gate": _B_in["w_gate"],
        "B_w_up": _B_in["w_up"],
        "B_w_down": _B_in["w_down"],
    }

def reference(A_x, A_w_r, A_w_i, B_x, B_w_r, B_w_gate, B_w_up, B_w_down):
    def _A_ref(x, w_r, w_i):
        B, S, D = x.shape
        X = (lambda x, axes=(-2,-1): torch.fft.rfft2(x.float(), dim=axes))(x, axes=(-2, -1))
        W = w_r + 1j * w_i
        X = X * W
        y = (lambda x, s, axes=(-2,-1): torch.fft.irfft2(x, s=s, dim=axes).to(torch.bfloat16))(X, (S, D), axes=(-2, -1))
        return y

    def _B_ref(x, w_r, w_gate, w_up, w_down):
        B, S, D = x.shape
        C = 2
        r = x @ w_r
        idx = torch.argsort(-r, axis=-1)[:, :C]
        idx_e = (lambda x, n, axis: torch.repeat_interleave(x, n, dim=axis))(idx.reshape(B, C, 1), D, axis=2)
        x_sel = (lambda x, i, axis: torch.take_along_dim(x, i, dim=axis))(x, idx_e, axis=1)
        g = _silu(x_sel @ w_gate)
        u = x_sel @ w_up
        y = (g * u) @ w_down
        r_sel = _sigmoid((lambda x, i, axis: torch.take_along_dim(x, i, dim=axis))(r, idx, axis=1))
        y = y * r_sel.reshape(B, C, 1)
        b_off = (torch.arange(B) * S).reshape(B, 1)
        flat_idx = (idx + b_off).reshape(B * C)
        zero = (x * 0.0).reshape(B * S, D)
        upd = _scatter_add(zero, flat_idx, y.reshape(B * C, D), axis=0)
        return x + upd.reshape(B, S, D)

    x = A_x
    h = x + _A_ref(_layernorm(x, axis=-1), A_w_r, A_w_i)
    h2 = h + _B_ref(_layernorm(h, axis=-1), B_w_r, B_w_gate, B_w_up, B_w_down)
    return h2
```

```python
import math, struct
def f2u(x): return struct.unpack('<I', struct.pack('<f', x))[0]
def fl(x): return '0x%08x' % f2u(x)
XT_OFF, WT_OFF, YT_OFF, H_OFF = 0x0, 0x250000, 0x4A0000, 0x6F0000
KEY_OFF, WMAX_OFF, ACC_OFF, STAT_OFF = 0x940000, 0x942000, 0x944000, 0x950000
COLB = 289 * 8192
NREP = 8
class G:
    def __init__(s): s.L = []
    def __call__(s, t):
        for l in t.strip('\n').split('\n'): s.L.append('    ' + l.strip())
    def lab(s, n): s.L.append(n + ':')
    def text(s): return '\n'.join(s.L) + '\n'
    def srd(s, d, p, size, off=0):
        if off:
            s(f's_add_u32 s{d}, s{p}, {hex(off)}\ns_addc_u32 s{d+1}, s{p+1}, 0')
        else:
            s(f's_mov_b32 s{d}, s{p}\ns_mov_b32 s{d+1}, s{p+1}')
        s(f's_mov_b32 s{d+2}, {hex(size)}\ns_mov_b32 s{d+3}, 0x20000')
    def red32(s, v, t, op='v_add_f32'):
        for p in ['quad_perm:[1,0,3,2]', 'quad_perm:[2,3,0,1]', 'row_half_mirror', 'row_mirror']:
            s(f's_nop 1\n{op}_dpp v{v}, v{v}, v{v} {p} row_mask:0xf bank_mask:0xf')
        s(f'ds_swizzle_b32 v{t}, v{v} offset:0x401F\ns_waitcnt lgkmcnt(0)\n{op} v{v}, v{v}, v{t}')
    def red64_to_s(s, v, t, sd, st, op='v_max_u32', sop='s_max_u32'):
        s.red32(v, t, op)
        s(f's_nop 1\nv_readlane_b32 s{sd}, v{v}, 0\nv_readlane_b32 s{st}, v{v}, 32\ns_nop 3\n{sop} s{sd}, s{sd}, s{st}')
    def rbf(s, a, b=None):
        if b is None:
            s(f'v_cvt_pk_bf16_f32 v{a}, v{a}, v{a}\nv_lshlrev_b32 v{a}, 16, v{a}')
        else:
            s(f'v_cvt_pk_bf16_f32 v{b}, v{a}, v{b}\nv_lshlrev_b32 v{a}, 16, v{b}\nv_and_b32 v{b}, 0xffff0000, v{b}')
    def sincos(s, c, sn, ang, scale=None):
        s(f'v_cos_f32 v{c}, v{ang}\nv_sin_f32 v{sn}, v{ang}')
        if scale is not None:
            s(f's_nop 0\nv_mul_f32 v{c}, {scale}, v{c}\nv_mul_f32 v{sn}, {scale}, v{sn}')
    def ln_stats(s, x, n, vm, vr, t, t2):
        s(f'v_add_f32 v{vm}, v{x}, v{x+1}')
        for i in range(2, n): s(f'v_add_f32 v{vm}, v{vm}, v{x+i}')
        s.red32(vm, t)
        s(f'v_mul_f32 v{vm}, {fl(1/576)}, v{vm}')
        s(f'v_sub_f32 v{t2}, v{x}, v{vm}\nv_mul_f32 v{vr}, v{t2}, v{t2}')
        for i in range(1, n): s(f'v_sub_f32 v{t2}, v{x+i}, v{vm}\nv_fmac_f32 v{vr}, v{t2}, v{t2}')
        s.red32(vr, t)
        s(f'v_mul_f32 v{vr}, {fl(1/576)}, v{vr}')
        s.rbf(vm, vr)
        s(f'v_add_f32 v{vr}, {fl(1e-5)}, v{vr}')
        s.rbf(vr)
        s(f'v_sqrt_f32 v{vr}, v{vr}\ns_nop 0')
        s.rbf(vr)
        s(f'v_rcp_f32 v{vr}, v{vr}\ns_nop 0')
    def ln_apply(s, x, o, n, vm, vr):
        for i in range(0, n, 2):
            a, b = o + i, o + i + 1
            s(f'v_sub_f32 v{a}, v{x+i}, v{vm}\nv_sub_f32 v{b}, v{x+i+1}, v{vm}')
            s.rbf(a, b)
            s(f'v_mul_f32 v{a}, v{a}, v{vr}\nv_mul_f32 v{b}, v{b}, v{vr}')
            s.rbf(a, b)
    def wscale_load(s, v, lane, srd):
        s(f'v_mul_u32_u24 v{v+12}, 48, v{lane}')
        for i in range(3): s(f'buffer_load_dwordx4 v[{v+4*i}:{v+4*i+3}], v{v+12}, s[{srd}:{srd+3}], 0 offen offset:{16*i}')
    def wscale_reduce(s, v, sE, st):
        s(f'v_max3_u32 v{v}, v{v}, v{v+1}, v{v+2}')
        for i in range(3, 11, 2): s(f'v_max3_u32 v{v}, v{v}, v{v+i}, v{v+i+1}')
        s(f'v_max_u32 v{v}, v{v}, v{v+11}')
        s.red64_to_s(v, v + 1, sE, st)
        s(f's_lshr_b32 s{sE}, s{sE}, 7\ns_max_u32 s{sE}, s{sE}, 1\ns_min_u32 s{sE}, s{sE}, 253')
def header(name): return f'.globl {name}\n.p2align 8\n.type {name},@function\n{name}:\n'
def desc(name, vg, sg=64):
    vg4 = (vg + 3) // 4 * 4
    return f'''.p2align 6
.amdhsa_kernel {name}
  .amdhsa_next_free_vgpr {vg4}
  .amdhsa_next_free_sgpr {sg}
  .amdhsa_accum_offset {vg4}
  .amdhsa_group_segment_fixed_size 0
  .amdhsa_kernarg_size 88
  .amdhsa_user_sgpr_count 2
  .amdhsa_user_sgpr_kernarg_segment_ptr 1
  .amdhsa_system_sgpr_workgroup_id_x 1
.end_amdhsa_kernel
'''
C18 = lambda m: math.cos(2 * math.pi * m / 18)
S18 = lambda m: math.sin(2 * math.pi * m / 18)
```

```python
from gen_common import *
def k1():
    g = G()
    g('''s_cmp_ge_u32 s2, 401
    s_cbranch_scc1 K1_END
    s_load_dwordx4 s[4:7], s[0:1], 0
    s_load_dwordx2 s[8:9], s[0:1], 16
    s_load_dwordx2 s[10:11], s[0:1], 80
    s_cmp_ge_u32 s2, 256
    s_cbranch_scc1 K1_TR
    s_and_b32 s3, s2, 7
    s_lshl_b32 s3, s3, 5
    s_lshr_b32 s12, s2, 3
    s_add_u32 s3, s3, s12''')
    g('''v_lshrrev_b32 v1, 5, v0
    v_and_b32 v2, 31, v0
    s_and_b32 s12, s3, 7
    s_lshl_b32 s12, s12, 3
    v_add_u32 v3, s12, v1
    v_lshlrev_b32 v3, 5, v3
    s_lshr_b32 s12, s3, 3
    v_add_u32 v3, s12, v3
    v_mul_u32_u24 v3, 1152, v3
    v_lshl_add_u32 v3, v2, 1, v3
    s_waitcnt lgkmcnt(0)''')
    g.srd(16, 4, 2048 * 1152)
    g.srd(20, 10, COLB, XT_OFF)
    X = 10
    for d2 in range(18): g(f'buffer_load_ushort v{X+d2}, v3, s[16:19], 0 offen offset:{64*d2}')
    g('v_cvt_f32_u32 v4, v2')
    for k in range(1, 10):
        g(f'v_mul_f32 v5, {fl(k/576)}, v4')
        g.sincos(28 + 2 * k, 29 + 2 * k, 5, fl(1 / math.sqrt(18)))
    g('''v_lshrrev_b32 v6, 6, v0
    v_and_b32 v7, 63, v0
    s_nop 0
    v_readfirstlane_b32 s13, v6
    v_and_b32 v8, 15, v7
    v_lshrrev_b32 v9, 4, v7
    s_and_b32 s14, s13, 1
    s_lshl_b32 s15, s14, 4
    v_add_u32 v64, s15, v8
    v_cvt_f32_u32 v65, v64
    v_mul_f32 v65, 0x3d000000, v65
    v_lshlrev_b32 v66, 2, v9
    v_cvt_f32_u32 v66, v66
    s_mul_i32 s15, s14, 0x80008000
    v_and_b32 v67, 1, v8
    v_mul_u32_u24 v67, 0x8000, v67
    v_lshl_or_b32 v67, v67, 16, v67''')
    for jj in range(4):
        g(f'v_add_f32 v5, {float(jj)}, v66\nv_mul_f32 v5, v5, v65')
        g.sincos(68, 69, 5, fl(1 / math.sqrt(32)))
        g(f'''v_cvt_pk_f16_f32 v{48+jj}, v68, v69
        v_cvt_pk_f16_f32 v{56+jj}, -v69, v68
        v_xor_b32 v{56+jj}, s15, v{56+jj}
        v_xor_b32 v{52+jj}, v67, v{48+jj}
        v_xor_b32 v{60+jj}, v67, v{56+jj}''')
    g('s_waitcnt vmcnt(0)')
    for d2 in range(18): g(f'v_lshlrev_b32 v{X+d2}, 16, v{X+d2}')
    g.ln_stats(X, 18, 70, 71, 72, 73)
    g.ln_apply(X, X, 18, 70, 71)
    A, B = 74, 82
    for j in range(1, 9):
        g(f'v_add_f32 v{A+j-1}, v{X+j}, v{X+18-j}\nv_sub_f32 v{B+j-1}, v{X+j}, v{X+18-j}')
    AP, AM, BP, BM = 90, 94, 98, 102
    for j in range(1, 5):
        g(f'''v_add_f32 v{AP+j-1}, v{A+j-1}, v{A+9-j-1}
        v_sub_f32 v{AM+j-1}, v{A+j-1}, v{A+9-j-1}
        v_add_f32 v{BP+j-1}, v{B+j-1}, v{B+9-j-1}
        v_sub_f32 v{BM+j-1}, v{B+j-1}, v{B+9-j-1}''')
    g(f'v_add_f32 v106, v{X}, v{X+9}\nv_sub_f32 v107, v{X}, v{X+9}')
    g('v_mul_u32_u24 v3, 144, v1\nv_lshl_add_u32 v3, v2, 2, v3')
    for k in range(10):
        a, bb, e = (AP, BM, 106) if k % 2 == 0 else (AM, BP, 107)
        g(f'v_fmamk_f32 v74, v{a}, {fl(C18(k))}, v{e}')
        for j in range(2, 5): g(f'v_fmac_f32 v74, {fl(C18(j*k))}, v{a+j-1}')
        c, s_ = 28 + 2 * k, 29 + 2 * k
        if k == 0:
            g(f'v_mul_f32 v74, {fl(1/math.sqrt(18))}, v74\nv_cvt_pk_f16_f32 v78, v74, 0')
        elif k == 9:
            g(f'v_mul_f32 v76, v74, v{c}\nv_mul_f32 v77, v74, v{s_}\nv_cvt_pk_f16_f32 v78, v76, -v77')
        else:
            g(f'v_mul_f32 v75, {fl(-S18(k))}, v{bb}')
            for j in range(2, 5): g(f'v_fmac_f32 v75, {fl(-S18(j*k))}, v{bb+j-1}')
            g(f'''v_mul_f32 v76, v74, v{c}
            v_mul_f32 v77, v75, v{c}
            v_fmac_f32 v76, v75, v{s_}
            v_fma_f32 v77, -v74, v{s_}, v77
            v_cvt_pk_f16_f32 v78, v76, v77''')
        g(f'ds_write_b32 v3, v78 offset:{k*1152}')
    g('''s_lshr_b32 s12, s13, 1
    s_mul_i32 s12, s12, 6912
    v_mul_u32_u24 v3, 144, v8
    v_lshl_add_u32 v3, v9, 4, v3
    v_add_u32 v3, s12, v3
    s_waitcnt lgkmcnt(0)
    s_barrier''')
    for i in range(3):
        for t in range(2): g(f'ds_read_b128 v[{10+8*i+4*t}:{13+8*i+4*t}], v3 offset:{i*2304+t*64}')
    g('''s_lshr_b32 s12, s13, 1
    s_mul_i32 s12, s12, 6
    v_lshrrev_b32 v4, 1, v9
    v_add_u32 v4, s12, v4
    v_mul_u32_u24 v5, 18, v64
    v_and_b32 v6, 1, v9
    s_lshl_b32 s12, s3, 1
    v_add_u32 v6, s12, v6
    v_lshlrev_b32 v6, 4, v6
    v_mov_b32 v7, 0x7fffff00''')
    for i in range(3):
        g(f's_waitcnt lgkmcnt({4-2*i})')
        for (D, T) in ((74 + 8 * i, 48), (78 + 8 * i, 56)):
            g(f'v_mfma_f32_16x16x32_f16 v[{D}:{D+3}], v[{10+8*i}:{13+8*i}], v[{T}:{T+3}], 0')
            g(f'v_mfma_f32_16x16x32_f16 v[{D}:{D+3}], v[{14+8*i}:{17+8*i}], v[{T+4}:{T+7}], v[{D}:{D+3}]')
    for i in range(3):
        g(f'''v_add_u32 v36, {2*i}, v4
        v_add_u32 v37, v5, v36
        v_sub_u32 v38, 576, v37
        s_cmp_eq_u32 s14, 1
        s_cselect_b64 vcc, -1, 0
        v_cndmask_b32 v37, v37, v38, vcc
        v_lshl_add_u32 v39, v37, 13, v6
        v_cmp_lt_u32 vcc, 9, v36
        s_nop 1
        v_cndmask_b32 v39, v39, v7, vcc''')
        g(f'''v_cmp_eq_u32 s[24:25], 9, v36
        v_cmp_eq_u32 s[26:27], 0, v36
        v_cmp_ne_u32 vcc, 0x120, v37
        s_nop 1
        s_and_b64 s[26:27], s[26:27], vcc
        s_or_b64 s[24:25], s[24:25], s[26:27]
        s_cmp_eq_u32 s14, 1
        s_cselect_b64 vcc, s[24:25], 0
        v_cndmask_b32 v{40+i}, v39, v7, vcc''')
    g('s_nop 7')
    for i in range(3):
        D = 74 + 8 * i
        g(f'''v_cvt_pk_f16_f32 v{D}, v{D}, v{D+1}
        v_cvt_pk_f16_f32 v{D+1}, v{D+2}, v{D+3}
        v_cvt_pk_f16_f32 v{D+2}, v{D+4}, v{D+5}
        v_cvt_pk_f16_f32 v{D+3}, v{D+6}, v{D+7}
        buffer_store_dwordx4 v[{D}:{D+3}], v{40+i}, s[20:23], 0 offen''')
    g('s_endpgm')
    g.lab('K1_TR')
    g(f'''s_sub_u32 s3, s2, 256
    s_lshl_b32 s12, s3, 8
    v_add_u32 v1, s12, v0
    s_mov_b32 s12, {(2**32 + 288)//289}
    v_mul_hi_u32 v2, v1, s12
    v_mul_u32_u24 v3, 289, v2
    v_sub_u32 v3, v1, v3
    v_and_b32 v4, 63, v2
    v_lshrrev_b32 v5, 6, v2
    v_lshl_add_u32 v6, v5, 10, v4
    v_mul_u32_u24 v6, 578, v6
    v_lshl_add_u32 v6, v3, 1, v6
    s_waitcnt lgkmcnt(0)''')
    g.srd(16, 6, 2048 * 578)
    g.srd(20, 8, 2048 * 578)
    g.srd(24, 10, COLB, WT_OFF)
    g.srd(28, 10, 580 * 4, WMAX_OFF)
    g.srd(32, 10, NREP * 1152 * 4, ACC_OFF)
    for q in range(16):
        g(f's_mov_b32 s13, {q*36992}')
        g(f'buffer_load_ushort v{10+q}, v6, s[16:19], s13 offen\nbuffer_load_ushort v{30+q}, v6, s[20:23], s13 offen')
    g('''v_lshrrev_b32 v7, 4, v4
    v_lshlrev_b32 v7, 6, v7
    v_and_b32 v8, 15, v4
    v_add_u32 v7, v7, v8
    v_lshlrev_b32 v7, 5, v7
    v_lshl_add_u32 v7, v5, 4, v7
    v_lshl_add_u32 v7, v3, 13, v7
    v_mov_b32 v8, 0x7fff0000
    v_cmp_le_u32 vcc, 0x9080, v1
    v_mov_b32 v50, 0
    v_mov_b32 v51, 0
    v_cndmask_b32 v7, v7, v8, vcc
    v_mov_b32 v52, 0
    v_mov_b32 v53, 0
    v_lshlrev_b32 v9, 4, v1
    buffer_store_dwordx4 v[50:53], v9, s[32:35], 0 offen
    s_waitcnt vmcnt(1)''')
    for q in range(16):
        g(f'v_max_u32 v50, v50, v{10+q}' if False else f'v_lshl_or_b32 v{10+q}, v{30+q}, 16, v{10+q}')
    g('v_and_b32 v54, 0x7fff7fff, v10')
    for q in range(1, 16): g(f'v_and_b32 v55, 0x7fff7fff, v{10+q}\nv_pk_max_u16 v54, v54, v55')
    for gg in range(4): g(f'buffer_store_dwordx4 v[{10+4*gg}:{13+4*gg}], v7, s[24:27], 0 offen offset:{512*gg}')
    g('v_lshrrev_b32 v55, 16, v54\nv_and_b32 v54, 0xffff, v54\nv_max_u32 v54, v54, v55')
    g.red64_to_s(54, 55, 13, 14)
    g('''v_lshrrev_b32 v56, 6, v0
    s_lshl_b32 s14, s3, 2
    v_add_lshl_u32 v56, v56, s14, 2
    v_mov_b32 v57, s13
    v_and_b32 v58, 63, v0
    v_cmp_eq_u32 vcc, 0, v58
    s_and_saveexec_b64 s[14:15], vcc
    buffer_store_dword v57, v56, s[28:31], 0 offen''')
    g.lab('K1_END')
    g('s_endpgm')
    return g.text(), 108
```

```python
from gen_common import *
def mf(g, D, A, B, first):
    g(f'v_mfma_f32_16x16x32_f16 v[{D}:{D+3}], v[{A}:{A+3}], v[{B}:{B+3}], ' + ('0' if first else f'v[{D}:{D+3}]'))
def pack4(g, O, R, I, negI=False):
    n = '-' if negI else ''
    g(f'''v_cvt_pk_f16_f32 v{O}, v{R}, v{R+1}
    v_cvt_pk_f16_f32 v{O+1}, v{R+2}, v{R+3}
    v_cvt_pk_f16_f32 v{O+2}, {n}v{I}, {n}v{I+1}
    v_cvt_pk_f16_f32 v{O+3}, {n}v{I+2}, {n}v{I+3}''')
def twid(g, R, I, TW, t):
    for r in range(4):
        c, s_ = TW + 2 * r, TW + 2 * r + 1
        g(f'''v_mul_f32 v{t}, v{R+r}, v{s_}
        v_mul_f32 v{R+r}, v{R+r}, v{c}
        v_fmac_f32 v{R+r}, v{I+r}, v{s_}
        v_fma_f32 v{I+r}, v{I+r}, v{c}, -v{t}''')
def k2():
    g = G()
    g('''s_cmp_ge_u32 s2, 289
    s_cbranch_scc1 K2_END
    s_load_dwordx2 s[10:11], s[0:1], 80
    v_lshrrev_b32 v6, 6, v0
    v_and_b32 v7, 63, v0
    v_and_b32 v8, 15, v0
    v_readfirstlane_b32 s13, v6
    v_lshrrev_b32 v9, 4, v7
    s_lshl_b32 s3, s2, 13
    v_lshlrev_b32 v1, 8, v8
    v_lshl_add_u32 v1, v9, 4, v1
    v_lshlrev_b32 v2, 5, v0
    s_waitcnt lgkmcnt(0)''')
    g.srd(16, 10, COLB, XT_OFF); g.srd(20, 10, COLB, WT_OFF); g.srd(24, 10, COLB, YT_OFF); g.srd(28, 10, 580 * 4, WMAX_OFF)
    A = 10
    g('v_add_u32 v3, 0x1000, v1')
    for mt in range(2):
        for t in range(4):
            g(f'buffer_load_dwordx4 v[{A+16*mt+4*t}:{A+16*mt+4*t+3}], v{1 if mt==0 else 3}, s[16:19], s3 offen offset:{64*t}')
    W = 42
    g(f'buffer_load_dwordx4 v[42:45], v2, s[20:23], s3 offen\nbuffer_load_dwordx4 v[46:49], v2, s[20:23], s3 offen offset:16')
    g.wscale_load(148, 7, 28)
    BRE, BIM, ARE, AIM, TW1, TW2 = 50, 66, 82, 98, 114, 130
    g('''s_lshl_b32 s14, s13, 4
    v_add_u32 v4, s14, v8
    v_cvt_f32_u32 v4, v4
    v_lshlrev_b32 v5, 2, v9
    v_cvt_f32_u32 v5, v5
    v_and_b32 v146, 1, v8
    v_mul_u32_u24 v146, 0x8000, v146
    v_lshl_or_b32 v146, v146, 16, v146
    v_mul_f32 v147, 0x3c800000, v4''')
    T = 162
    for t in range(2):
        for j in range(4):
            g(f'v_add_f32 v170, {float(16*t+j)}, v5\nv_mul_f32 v170, v170, v147')
            g.sincos(T + j, T + 4 + j, 170, '0x3e000000')
        g(f'''v_cvt_pk_f16_f32 v{BRE+4*t}, v{T}, v{T+1}
        v_cvt_pk_f16_f32 v{BRE+4*t+1}, v{T+2}, v{T+3}
        v_cvt_pk_f16_f32 v{BRE+4*t+2}, v{T+4}, v{T+5}
        v_cvt_pk_f16_f32 v{BRE+4*t+3}, v{T+6}, v{T+7}
        v_xor_b32 v{BIM+4*t}, 0x80008000, v{BRE+4*t+2}
        v_xor_b32 v{BIM+4*t+1}, 0x80008000, v{BRE+4*t+3}
        v_mov_b32 v{BIM+4*t+2}, v{BRE+4*t}
        v_mov_b32 v{BIM+4*t+3}, v{BRE+4*t+1}''')
        for j in range(4):
            g(f'v_xor_b32 v{BRE+4*(t+2)+j}, v146, v{BRE+4*t+j}\nv_xor_b32 v{BIM+4*(t+2)+j}, v146, v{BIM+4*t+j}')
    g('v_cvt_f32_u32 v171, v8\nv_mul_f32 v147, 0x3d000000, v171')
    for j in range(4):
        g(f'v_add_f32 v170, {float(j)}, v5\nv_mul_f32 v170, v170, v147')
        g.sincos(T + j, T + 4 + j, 170, fl(1 / math.sqrt(32)))
    g(f'''v_cvt_pk_f16_f32 v{ARE}, v{T}, v{T+1}
    v_cvt_pk_f16_f32 v{ARE+1}, v{T+2}, v{T+3}
    v_cvt_pk_f16_f32 v{ARE+2}, v{T+4}, v{T+5}
    v_cvt_pk_f16_f32 v{ARE+3}, v{T+6}, v{T+7}
    v_xor_b32 v{AIM}, 0x80008000, v{ARE+2}
    v_xor_b32 v{AIM+1}, 0x80008000, v{ARE+3}
    v_mov_b32 v{AIM+2}, v{ARE}
    v_mov_b32 v{AIM+3}, v{ARE+1}''')
    for B_ in (ARE, AIM):
        for j in range(4):
            g(f'''v_xor_b32 v{B_+4+j}, v146, v{B_+j}
            v_xor_b32 v{B_+8+j}, 0x80000000, v{B_+j}
            v_xor_b32 v{B_+12+j}, 0x80000000, v{B_+4+j}''')
    g('v_mul_f32 v147, 0x3a000000, v4')
    for mt in range(2):
        for r in range(4):
            g(f'v_add_f32 v170, {float(16*mt+r)}, v5\nv_mul_f32 v170, v170, v147')
            g.sincos(TW1 + 8 * mt + 2 * r, TW1 + 8 * mt + 2 * r + 1, 170)
    g('v_cvt_f32_u32 v169, s14\nv_add_f32 v169, v169, v5')
    for st in range(2):
        g(f'v_add_f32 v147, {float(16*st)}, v171\nv_mul_f32 v147, 0x3a000000, v147')
        for r in range(4):
            g(f'v_add_f32 v170, {float(r)}, v169\nv_mul_f32 v170, v170, v147')
            g.sincos(TW2 + 8 * st + 2 * r, TW2 + 8 * st + 2 * r + 1, 170)
    g(f'''s_mul_i32 s14, s2, {(65536+17)//18}
    s_lshr_b32 s14, s14, 16
    s_mul_i32 s14, s14, 18
    s_sub_u32 s14, s2, s14
    s_mov_b32 s15, 1.0
    s_cmp_eq_u32 s14, 0
    s_cselect_b32 s15, 2.0, s15
    s_cmp_eq_u32 s14, 9
    s_cselect_b32 s15, 2.0, s15
    s_cmp_eq_u32 s2, 0
    s_cselect_b32 s15, 1.0, s15
    s_cmp_eq_u32 s2, 288
    s_cselect_b32 s15, 1.0, s15
    v_mul_u32_u24 v1, 272, v8
    v_lshl_add_u32 v1, v9, 4, v1
    s_lshl_b32 s14, s13, 6
    v_add_u32 v2, s14, v1
    s_lshl_b32 s14, s13, 11
    v_lshlrev_b32 v3, 7, v8
    v_lshl_add_u32 v3, v9, 4, v3
    v_add_u32 v3, s14, v3''')
    C = 172
    g('s_waitcnt vmcnt(5)')
    for mt in range(2):
        for t in range(4):
            mf(g, C + 4 * mt, A + 16 * mt + 4 * t, BRE + 4 * t, t == 0)
            mf(g, C + 8 + 4 * mt, A + 16 * mt + 4 * t, BIM + 4 * t, t == 0)
    g('s_waitcnt vmcnt(0)')
    g.wscale_reduce(148, 32, 33)
    g('s_sub_u32 s33, 254, s32\ns_lshl_b32 s33, s33, 23')
    D1 = 10
    for mt in range(2):
        twid(g, C + 4 * mt, C + 8 + 4 * mt, TW1 + 8 * mt, 170)
        pack4(g, D1 + 4 * mt, C + 4 * mt, C + 8 + 4 * mt)
    for i in range(8):
        g(f'''v_lshlrev_b32 v{148+2*i}, 16, v{W+i}
        v_and_b32 v{149+2*i}, 0xffff0000, v{W+i}
        v_mul_f32 v{148+2*i}, s33, v{148+2*i}
        v_mul_f32 v{149+2*i}, s33, v{149+2*i}''')
    for kt in range(2):
        for t in range(2):
            mf(g, C + 4 * kt, ARE + 8 * kt + 4 * t, D1 + 4 * t, t == 0)
            mf(g, C + 8 + 4 * kt, AIM + 8 * kt + 4 * t, D1 + 4 * t, t == 0)
    g('s_nop 7')
    D2 = 18
    for kt in range(2):
        for r in range(4):
            xr, xi, wr, wi = C + 4 * kt + r, C + 8 + 4 * kt + r, 148 + 2 * (4 * kt + r), 149 + 2 * (4 * kt + r)
            g(f'''v_mul_f32 v170, v{xr}, v{wi}
            v_mul_f32 v{xr}, v{xr}, v{wr}
            v_fma_f32 v{xr}, -v{xi}, v{wi}, v{xr}
            v_fma_f32 v{xi}, v{xi}, v{wr}, v170''')
        pack4(g, D2 + 4 * kt, C + 4 * kt, C + 8 + 4 * kt, True)
    g('s_nop 1')
    for st in range(2):
        for kt in range(2):
            mf(g, C + 4 * st, D2 + 4 * kt, ARE + 8 * st + 4 * kt, kt == 0)
            mf(g, C + 8 + 4 * st, D2 + 4 * kt, AIM + 8 * st + 4 * kt, kt == 0)
    g('s_nop 7')
    for st in range(2):
        twid(g, C + 4 * st, C + 8 + 4 * st, TW2 + 8 * st, 170)
        pack4(g, D1 + 4 * st, C + 4 * st, C + 8 + 4 * st)
        g(f'ds_write_b128 v2, v[{D1+4*st}:{D1+4*st+3}] offset:{16*272*st}')
    g('s_waitcnt lgkmcnt(0)\ns_barrier')
    for st in range(2):
        for t in range(4):
            g(f'ds_read_b128 v[{A+16*st+4*t}:{A+16*st+4*t+3}], v1 offset:{16*272*st+64*t}')
    for st in range(2):
        for t in range(4):
            g(f's_waitcnt lgkmcnt({7-4*st-t})')
            mf(g, C + 4 * st, A + 16 * st + 4 * t, BRE + 4 * t, t == 0)
            mf(g, C + 8 + 4 * st, A + 16 * st + 4 * t, BIM + 4 * t, t == 0)
    g('s_nop 7')
    for st in range(2):
        for r in range(4):
            g(f'''v_mul_f32 v{C+4*st+r}, s15, v{C+4*st+r}
            v_mul_f32 v{C+8+4*st+r}, s15, v{C+8+4*st+r}
            v_cvt_pk_f16_f32 v{C+4*st+r}, v{C+4*st+r}, -v{C+8+4*st+r}''')
        g(f'buffer_store_dwordx4 v[{C+4*st}:{C+4*st+3}], v3, s[24:27], s3 offen offset:{64*st}')
    g.lab('K2_END')
    g('s_endpgm')
    return g.text(), 188
```

```python
from gen_common import *
def k3():
    g = G()
    g('''s_cmp_ge_u32 s2, 256
    s_cbranch_scc1 K3_END
    s_load_dwordx2 s[4:5], s[0:1], 0
    s_load_dwordx2 s[6:7], s[0:1], 32
    s_load_dwordx2 s[8:9], s[0:1], 64
    s_load_dwordx2 s[10:11], s[0:1], 80
    s_and_b32 s3, s2, 7
    s_lshl_b32 s3, s3, 5
    s_lshr_b32 s12, s2, 3
    s_add_u32 s3, s3, s12
    v_lshrrev_b32 v1, 5, v0
    v_and_b32 v2, 31, v0
    v_lshrrev_b32 v6, 6, v0
    v_and_b32 v7, 63, v0
    v_and_b32 v8, 15, v0
    v_readfirstlane_b32 s13, v6
    v_lshrrev_b32 v9, 4, v7
    s_lshl_b32 s12, s3, 3
    v_add_u32 v3, s12, v1
    v_mul_u32_u24 v3, 1152, v3
    v_lshl_add_u32 v3, v2, 1, v3
    v_lshlrev_b32 v4, 1, v2
    v_lshrrev_b32 v5, 1, v0
    v_lshlrev_b32 v5, 13, v5
    v_and_b32 v110, 1, v0
    v_lshl_add_u32 v5, v110, 4, v5
    s_lshl_b32 s14, s3, 5
    s_waitcnt lgkmcnt(0)''')
    g.srd(16, 4, 2048 * 1152); g.srd(20, 6, 1152); g.srd(24, 8, 2048 * 1152)
    g.srd(28, 10, COLB, YT_OFF); g.srd(32, 10, 580 * 4, WMAX_OFF); g.srd(36, 10, 2048 * 1152, H_OFF)
    g.srd(40, 10, 8192, KEY_OFF); g.srd(44, 10, 2048 * 8, STAT_OFF)
    Y = 10
    for i in range(3):
        g(f's_add_u32 s15, s14, {i*128*8192}\nbuffer_load_dwordx4 v[{Y+4*i}:{Y+4*i+3}], v5, s[28:31], s15 offen')
    g.wscale_load(112, 7, 32)
    X, WR = 22, 40
    for d2 in range(18): g(f'buffer_load_ushort v{X+d2}, v3, s[16:19], 0 offen offset:{64*d2}')
    for d2 in range(18): g(f'buffer_load_ushort v{WR+d2}, v4, s[20:23], 0 offen offset:{64*d2}')
    g('''v_lshrrev_b32 v58, 7, v0
    v_mul_u32_u24 v58, 72, v58
    v_bfe_u32 v59, v0, 4, 3
    v_add_u32 v58, v58, v59
    v_mul_u32_u24 v58, 144, v58
    v_lshl_add_u32 v59, v8, 2, 64
    v_and_b32 v60, 0x8f, v0
    v_cmp_eq_u32 vcc, 0, v60
    v_mov_b32 v60, 0x80
    v_mov_b32 v61, 0
    v_cndmask_b32 v59, v59, v60, vcc
    v_add_u32 v58, v58, v59
    ds_write_b32 v58, v61''')
    for i in range(3):
        g(f'''v_lshrrev_b32 v64, 1, v0
        v_add_u32 v64, {128*i}, v64
        v_min_u32 v64, 0x121, v64
        v_mul_u32_u24 v65, {(65536+17)//18}, v64
        v_lshrrev_b32 v65, 16, v65
        v_mul_u32_u24 v66, 18, v65
        v_sub_u32 v66, v64, v66
        v_cmp_lt_u32 vcc, 9, v66
        v_sub_u32 v67, 18, v66
        v_sub_u32 v68, 31, v65
        v_cndmask_b32 v66, v66, v67, vcc
        v_cndmask_b32 v65, v65, v68, vcc
        v_mov_b32 v67, 0x80000000
        v_cndmask_b32 v{61+i}, 0, v67, vcc
        v_lshlrev_b32 v66, 1, v66
        v_add_u32 v66, v66, v110
        v_mul_u32_u24 v66, 576, v66
        v_lshl_add_u32 v{58+i}, v65, 2, v66''')
    g('''v_cmp_lt_u32 vcc, 65, v0
    v_mov_b32 v64, 0x84
    s_nop 0
    v_cndmask_b32 v60, v60, v64, vcc''')
    g('''v_lshrrev_b32 v64, 2, v8
    v_lshlrev_b32 v64, 1, v64
    v_bfe_u32 v65, v8, 1, 1
    v_add_u32 v64, v64, v65
    s_lshl_b32 s12, s13, 3
    v_add_u32 v64, s12, v64
    v_mul_u32_u24 v65, 0x8000, v65
    v_lshl_or_b32 v65, v65, 16, v65
    v_cvt_f32_u32 v64, v64
    v_mul_f32 v64, 0x3d000000, v64
    v_lshlrev_b32 v66, 2, v9
    v_cvt_f32_u32 v66, v66
    v_and_b32 v67, 1, v8
    v_cmp_eq_u32 s[48:49], 1, v67''')
    for jj in range(4):
        g(f'v_add_f32 v67, {float(jj)}, v66\nv_mul_f32 v67, v67, v64')
        g.sincos(68, 69, 67, fl(1 / math.sqrt(32)))
        g(f'''v_cvt_pk_f16_f32 v78, v68, -v69
        v_cvt_pk_f16_f32 v79, v69, v68
        v_cndmask_b32 v{70+jj}, v78, v79, s[48:49]
        v_xor_b32 v{74+jj}, v65, v{70+jj}''')
    g('v_cvt_f32_u32 v64, v2')
    for k in range(1, 10):
        g(f'v_mul_f32 v65, {fl(k/576)}, v64')
        g.sincos(78 + 2 * k, 79 + 2 * k, 65)
    g('s_waitcnt vmcnt(39)')
    for i in range(3):
        for r in range(4):
            g(f'v_xor_b32 v{Y+4*i+r}, v{61+i}, v{Y+4*i+r}\nds_write_b32 v{58+i}, v{Y+4*i+r} offset:{144*r}')
    g('''v_mul_u32_u24 v58, 144, v8
    v_lshl_add_u32 v58, v9, 4, v58
    v_and_b32 v59, 7, v8
    v_lshlrev_b32 v59, 5, v59
    v_lshl_add_u32 v59, v9, 1, v59
    v_add_u32 v59, s12, v59
    v_mul_u32_u24 v59, 80, v59
    v_lshrrev_b32 v60, 3, v8
    v_lshl_add_u32 v59, v60, 3, v59
    v_add_u32 v59, 11520, v59
    v_mul_u32_u24 v60, 80, v0
    v_add_u32 v60, 11520, v60
    s_waitcnt lgkmcnt(0)
    s_barrier''')
    BB = 126
    for nt in range(5):
        for t in range(2): g(f'ds_read_b128 v[{BB+8*nt+4*t}:{BB+8*nt+4*t+3}], v58 offset:{2304*nt+64*t}')
    g('s_waitcnt vmcnt(36)')
    g.wscale_reduce(112, 50, 51)
    C = 2 * 0 + 166
    for nt in range(5):
        g(f'v_mfma_f32_16x16x32_f16 v[{C+4*nt}:{C+4*nt+3}], v[70:73], v[{BB+8*nt}:{BB+8*nt+3}], 0')
        g(f'v_mfma_f32_16x16x32_f16 v[{C+4*nt}:{C+4*nt+3}], v[74:77], v[{BB+8*nt+4}:{BB+8*nt+7}], v[{C+4*nt}:{C+4*nt+3}]')
    g(f's_lshl_b32 s50, s50, 23\nv_mov_b32 v64, s50\nv_mul_f32 v64, {fl(1/math.sqrt(18))}, v64\nv_add_f32 v65, v64, v64')
    for k in range(1, 10):
        sc = 64 if k == 9 else 65
        g(f'v_mul_f32 v{78+2*k}, v{sc}, v{78+2*k}\nv_mul_f32 v{79+2*k}, v{sc}, v{79+2*k}')
    for nt in range(5):
        g(f'ds_write_b64 v59, v[{C+4*nt}:{C+4*nt+1}] offset:{16*nt}\nds_write_b64 v59, v[{C+4*nt+2}:{C+4*nt+3}] offset:{16*nt+80}')
    g('s_waitcnt lgkmcnt(0)\ns_barrier')
    V = 126
    for i in range(5): g(f'ds_read_b128 v[{V+4*i}:{V+4*i+3}], v60 offset:{16*i}')
    g('s_waitcnt vmcnt(0)')
    for d2 in range(18): g(f'v_lshlrev_b32 v{X+d2}, 16, v{X+d2}\nv_lshlrev_b32 v{WR+d2}, 16, v{WR+d2}')
    g('s_waitcnt lgkmcnt(0)')
    g(f'v_mul_f32 v{V}, v64, v{V}')
    for k in range(1, 10):
        c, s_, vr, vi = 78 + 2 * k, 79 + 2 * k, V + 2 * k, V + 2 * k + 1
        if k < 9: g(f'v_mul_f32 v66, v{vr}, v{s_}')
        g(f'v_mul_f32 v{vr}, v{vr}, v{c}\nv_fma_f32 v{vr}, -v{vi}, v{s_}, v{vr}')
        if k < 9: g(f'v_fma_f32 v{vi}, v{vi}, v{c}, v66')
    PE, PO, QE, QO = 146, 151, 156, 160
    for j in range(5):
        g(f'v_fmamk_f32 v{PE+j}, v{V+4}, {fl(C18(2*j))}, v{V}')
        for k in (4, 6, 8): g(f'v_fmac_f32 v{PE+j}, {fl(C18(k*j))}, v{V+2*k}')
        g(f'v_mul_f32 v{PO+j}, {fl((-1.0)**j)}, v{V+18}')
        for k in (1, 3, 5, 7): g(f'v_fmac_f32 v{PO+j}, {fl(C18(k*j))}, v{V+2*k}')
    for j in range(1, 5):
        g(f'v_mul_f32 v{QE+j-1}, {fl(S18(2*j))}, v{V+5}')
        for k in (4, 6, 8): g(f'v_fmac_f32 v{QE+j-1}, {fl(S18(k*j))}, v{V+2*k+1}')
        g(f'v_mul_f32 v{QO+j-1}, {fl(S18(j))}, v{V+3}')
        for k in (3, 5, 7): g(f'v_fmac_f32 v{QO+j-1}, {fl(S18(k*j))}, v{V+2*k+1}')
    Yv = 166
    g(f'v_add_f32 v{Yv}, v{PE}, v{PO}\nv_sub_f32 v{Yv+9}, v{PE}, v{PO}')
    for j in range(1, 5):
        g(f'''v_add_f32 v66, v{PE+j}, v{PO+j}
        v_sub_f32 v67, v{PE+j}, v{PO+j}
        v_add_f32 v68, v{QO+j-1}, v{QE+j-1}
        v_sub_f32 v69, v{QO+j-1}, v{QE+j-1}
        v_sub_f32 v{Yv+j}, v66, v68
        v_add_f32 v{Yv+18-j}, v66, v68
        v_sub_f32 v{Yv+9-j}, v67, v69
        v_add_f32 v{Yv+9+j}, v67, v69''')
    for i in range(0, 18, 2):
        g.rbf(Yv + i, Yv + i + 1)
        g(f'v_add_f32 v{X+i}, v{X+i}, v{Yv+i}\nv_add_f32 v{X+i+1}, v{X+i+1}, v{Yv+i+1}')
        g.rbf(X + i, X + i + 1)
        g(f'buffer_store_short_d16_hi v{X+i}, v3, s[36:39], 0 offen offset:{64*i}')
        g(f'buffer_store_short_d16_hi v{X+i+1}, v3, s[36:39], 0 offen offset:{64*i+64}')
    g.ln_stats(X, 18, 70, 71, 72, 73)
    g.ln_apply(X, Yv, 18, 70, 71)
    g(f'v_mul_f32 v74, v{Yv}, v{WR}')
    for i in range(1, 18): g(f'v_fmac_f32 v74, v{Yv+i}, v{WR+i}')
    for i in range(0, 18, 2):
        g(f'''v_add_f32 v{Yv+i}, v{Yv+i}, v{X+i}
        v_add_f32 v{Yv+i+1}, v{Yv+i+1}, v{X+i+1}
        v_cvt_pk_bf16_f32 v{Yv+i}, v{Yv+i}, v{Yv+i+1}
        buffer_store_short v{Yv+i}, v3, s[24:27], 0 offen offset:{64*i}
        buffer_store_short_d16_hi v{Yv+i}, v3, s[24:27], 0 offen offset:{64*i+64}''')
    g.red32(74, 72)
    g('''v_cvt_pk_bf16_f32 v74, v74, v74
    v_and_b32 v74, 0xffff0000, v74
    v_ashrrev_i32 v75, 31, v74
    v_or_b32 v75, 0x80000000, v75
    v_xor_b32 v74, v74, v75
    v_and_b32 v74, 0xffff0000, v74
    s_lshl_b32 s12, s3, 3
    v_add_u32 v75, s12, v1
    v_sub_u32 v76, 0xffff, v75
    v_or_b32 v74, v74, v76
    v_lshlrev_b32 v76, 2, v75
    v_lshlrev_b32 v77, 3, v75
    v_cmp_eq_u32 vcc, 0, v2
    s_and_saveexec_b64 s[14:15], vcc
    buffer_store_dword v74, v76, s[40:43], 0 offen
    buffer_store_dwordx2 v[70:71], v77, s[44:47], 0 offen''')
    g.lab('K3_END')
    g('s_endpgm')
    return g.text(), 186
```

```python
from gen_common import *
NW4 = 144
def k4():
    g = G()
    g(f'''s_cmp_ge_u32 s2, {NW4}
    s_cbranch_scc1 K4_END
    s_load_dwordx4 s[4:7], s[0:1], 40
    s_load_dwordx4 s[8:11], s[0:1], 56
    s_load_dwordx4 s[12:15], s[0:1], 72
    v_and_b32 v1, 7, v0
    v_lshrrev_b32 v2, 3, v0
    v_mul_u32_u24 v3, 9216, v2
    v_lshl_add_u32 v3, v1, 3, v3
    s_lshl_b32 s3, s2, 6
    v_add_u32 v3, s3, v3
    v_and_b32 v7, 63, v0
    v_lshlrev_b32 v4, 4, v7
    v_mul_u32_u24 v5, 911, v0
    v_lshrrev_b32 v5, 16, v5
    v_mul_u32_u24 v6, 72, v5
    v_sub_u32 v6, v0, v6
    v_mul_u32_u24 v8, 1152, v5
    v_lshl_add_u32 v8, v6, 4, v8
    s_mul_i32 s3, s2, 36864
    v_add_u32 v8, s3, v8
    v_mov_b32 v9, 0x7fff0000
    v_cmp_lt_u32 vcc, 2, v5
    s_waitcnt lgkmcnt(0)
    v_cndmask_b32 v8, v8, v9, vcc
    v_cmp_lt_u32 vcc, 1, v5
    s_nop 1
    v_cndmask_b32 v9, v8, v9, vcc''')
    g.srd(16, 4, 576 * 9216); g.srd(20, 6, 576 * 9216); g.srd(24, 8, 4608 * 1152); g.srd(28, 10, 2048 * 1152)
    g.srd(32, 12, 256); g.srd(36, 14, 8192, KEY_OFF); g.srd(40, 14, 2048 * 1152, H_OFF)
    g.srd(44, 14, NREP * 4608, ACC_OFF); g.srd(48, 14, 2048 * 8, STAT_OFF)
    KY = 140
    for i in range(8): g(f'buffer_load_dwordx4 v[{KY+4*i}:{KY+4*i+3}], v4, s[36:39], 0 offen offset:{1024*(i%4)}' if i < 4 else
                         f's_movk_i32 s3, 0x1000\nbuffer_load_dwordx4 v[{KY+4*i}:{KY+4*i+3}], v4, s[36:39], s3 offen offset:{1024*(i%4)}')
    WG, WU, WD = 10, 46, 82
    for i in range(18):
        g(f's_mov_b32 s3, {i*294912}\nbuffer_load_dwordx2 v[{WG+2*i}:{WG+2*i+1}], v3, s[16:19], s3 offen\nbuffer_load_dwordx2 v[{WU+2*i}:{WU+2*i+1}], v3, s[20:23], s3 offen')
    for i in range(11):
        g(f's_mov_b32 s3, {i*3456}\nbuffer_load_dwordx4 v[{WD+4*i}:{WD+4*i+3}], v{8 if i<10 else 9}, s[24:27], s3 offen')
    g('s_waitcnt vmcnt(47)')
    g(f'v_max_u32 v126, v{KY}, v{KY+1}\nv_min_u32 v127, v{KY}, v{KY+1}')
    for i in range(2, 32): g(f'v_med3_u32 v127, v126, v127, v{KY+i}\nv_max_u32 v126, v126, v{KY+i}')
    g('v_mov_b32 v128, v126')
    g.red64_to_s(128, 129, 52, 54)
    g('v_cmp_eq_u32 vcc, s52, v126\ns_nop 1\nv_cndmask_b32 v128, v126, v127, vcc')
    g.red64_to_s(128, 129, 53, 54)
    g('''s_and_b32 s54, s52, 0xffff
    s_sub_u32 s54, 0xffff, s54
    s_and_b32 s55, s53, 0xffff
    s_sub_u32 s55, 0xffff, s55
    s_lshl_b32 s56, s54, 3
    s_lshl_b32 s57, s55, 3
    s_mul_i32 s54, s54, 1152
    s_mul_i32 s55, s55, 1152
    v_lshlrev_b32 v126, 1, v0
    v_mov_b32 v127, 0
    buffer_load_dwordx2 v[128:129], v127, s[48:51], s56 offen
    buffer_load_dwordx2 v[130:131], v127, s[48:51], s57 offen''')
    for j in range(3):
        g(f'buffer_load_ushort v{KY+2*j}, v126, s[40:43], s54 offen offset:{512*j}\nbuffer_load_ushort v{KY+2*j+1}, v126, s[40:43], s55 offen offset:{512*j}')
    g('v_lshlrev_b32 v127, 3, v0\ns_waitcnt vmcnt(0)')
    for j in range(3):
        a, b = KY + 2 * j, KY + 2 * j + 1
        c, d = a + 6, b + 6
        g(f'v_lshlrev_b32 v{a}, 16, v{a}\nv_lshlrev_b32 v{b}, 16, v{b}\nv_sub_f32 v{c}, v{a}, v128\nv_sub_f32 v{d}, v{b}, v130')
        g.rbf(c, d)
        g(f'v_mul_f32 v{c}, v{c}, v129\nv_mul_f32 v{d}, v{d}, v131')
        g.rbf(c, d)
        g(f'ds_write_b64 v127, v[{c}:{d}] offset:{2048*j}')
    g('v_lshlrev_b32 v126, 3, v2\ns_waitcnt lgkmcnt(0)\ns_barrier')
    XS = 172
    for i in range(18): g(f'ds_read_b64 v[{XS+2*i}:{XS+2*i+1}], v126 offset:{256*i}')
    AC = 208
    for i in range(16): g(f'v_mov_b32 v{AC+i}, 0')
    for i in range(18):
        g(f's_waitcnt lgkmcnt({17-i})' if 17 - i < 16 else '')
        for m, Wb in ((0, WG), (1, WU)):
            g(f'''v_lshlrev_b32 v132, 16, v{Wb+2*i}
            v_and_b32 v133, 0xffff0000, v{Wb+2*i}
            v_lshlrev_b32 v134, 16, v{Wb+2*i+1}
            v_and_b32 v135, 0xffff0000, v{Wb+2*i+1}''')
            if i < 2 and m == 0: g('s_waitcnt lgkmcnt(15)')
            for tok in range(2):
                for p in range(2):
                    a = AC + 8 * m + 4 * tok + 2 * p
                    g(f'v_pk_fma_f32 v[{a}:{a+1}], v[{132+2*p}:{133+2*p}], v[{XS+2*i}:{XS+2*i+1}], v[{a}:{a+1}] op_sel:[0,{tok},0] op_sel_hi:[1,{tok},1]')
    g('s_nop 1')
    for i in range(16): g(f'v_add_f32_dpp v{AC+i}, v{AC+i}, v{AC+i} row_ror:8 row_mask:0xf bank_mask:0xf')
    g('''v_lshrrev_b32 v126, 4, v0
    v_mul_u32_u24 v126, 528, v126
    v_lshl_add_u32 v126, v1, 4, v126''')
    for mt in range(4): g(f'ds_write_b128 v126, v[{AC+4*mt}:{AC+4*mt+3}] offset:{6144+128*mt}')
    g('''v_lshlrev_b32 v126, 2, v7
    s_waitcnt lgkmcnt(0)
    s_barrier''')
    for p in range(16): g(f'ds_read_b32 v{XS+p}, v126 offset:{6144+528*p}\nds_read_b32 v{XS+16+p}, v126 offset:{6144+528*p+256}')
    g('s_waitcnt lgkmcnt(0)')
    for p in range(1, 16): g(f'v_add_f32 v{XS}, v{XS}, v{XS+p}\nv_add_f32 v{XS+16}, v{XS+16}, v{XS+16+p}')
    g.rbf(XS, XS + 16)
    g(f'''v_mul_f32 v132, {fl(-1/math.log(2))}, v{XS}
    v_exp_f32 v132, v132
    s_nop 0
    v_add_f32 v132, 1.0, v132
    v_rcp_f32 v132, v132
    s_nop 0
    v_mul_f32 v132, v132, v{XS}''')
    g.rbf(132)
    g(f'v_mul_f32 v132, v132, v{XS+16}')
    g.rbf(132)
    g('''v_lshrrev_b32 v133, 6, v0
    v_mul_u32_u24 v133, 320, v133
    v_and_b32 v134, 31, v7
    v_lshl_add_u32 v134, v134, 3, v133
    v_lshrrev_b32 v135, 5, v7
    v_lshl_add_u32 v134, v135, 2, v134
    v_mov_b32 v135, 0
    v_lshl_add_u32 v136, v8*0+v7, 2, v133'''.replace('v8*0+v7', 'v7'))
    g('''v_and_b32 v136, 15, v7
    v_lshl_add_u32 v136, v136, 2, v133
    ds_write_b32 v136, v135 offset:15104
    ds_write_b32 v134, v132 offset:14848
    v_lshl_add_u32 v136, v5, 3, v133
    s_waitcnt lgkmcnt(0)''')
    for i in range(11): g(f'ds_read_b64 v[{XS+2*i}:{XS+2*i+1}], v136 offset:{14848+24*i}')
    for i in range(16): g(f'v_mov_b32 v{AC+i}, 0')
    for i in range(11):
        g(f's_waitcnt lgkmcnt({10-i})')
        for p in range(4):
            g(f'v_lshlrev_b32 v132, 16, v{WD+4*i+p}\nv_and_b32 v133, 0xffff0000, v{WD+4*i+p}')
            for tok in range(2):
                a = AC + 8 * tok + 2 * p
                g(f'v_pk_fma_f32 v[{a}:{a+1}], v[132:133], v[{XS+2*i}:{XS+2*i+1}], v[{a}:{a+1}] op_sel:[0,{tok},0] op_sel_hi:[1,{tok},1]')
    g('''v_mul_u32_u24 v126, 4608, v5
    v_lshl_add_u32 v126, v6, 5, v126''')
    for tok in range(2):
        for h in range(2): g(f'ds_write_b128 v126, v[{AC+8*tok+4*h}:{AC+8*tok+4*h+3}] offset:{16384+2304*tok+16*h}')
    g(f'''v_lshlrev_b32 v126, 2, v0
    s_and_b32 s3, s2, {NREP-1}
    s_mul_i32 s3, s3, 4608
    s_waitcnt lgkmcnt(0)
    s_barrier''')
    for j in range(5):
        for r in range(3): g(f'ds_read_b32 v{XS+3*j+r}, v126 offset:{16384+4608*r+1024*j}')
    g('v_add_u32 v127, 0x1000, v126\nv_mov_b32 v132, 0x7fff0000\nv_cmp_lt_u32 vcc, 127, v0\ns_nop 1\nv_cndmask_b32 v127, v127, v132, vcc\ns_waitcnt lgkmcnt(0)')
    for j in range(5):
        g(f'v_add_f32 v{XS+3*j}, v{XS+3*j}, v{XS+3*j+1}\nv_add_f32 v{XS+3*j}, v{XS+3*j}, v{XS+3*j+2}')
        g(f'buffer_atomic_add_f32 v{XS+3*j}, v126, s[44:47], s3 offen offset:{1024*j}' if j < 4 else
          f'buffer_atomic_add_f32 v{XS+3*j}, v127, s[44:47], s3 offen')
    g(f'''s_waitcnt vmcnt(0)
    s_barrier
    v_mov_b32 v132, 1
    v_mov_b32 v133, 0
    v_cmp_eq_u32 vcc, 0, v0
    s_and_saveexec_b64 s[58:59], vcc
    s_cbranch_execz K4_SKIP
    buffer_atomic_add v132, v133, s[32:35], 0 offen sc0
    s_waitcnt vmcnt(0)
    ds_write_b32 v133, v132''')
    g.lab('K4_SKIP')
    g(f'''s_mov_b64 exec, s[58:59]
    s_waitcnt lgkmcnt(0)
    s_barrier
    ds_read_b32 v132, v133
    s_waitcnt lgkmcnt(0)
    v_readfirstlane_b32 s3, v132
    s_cmp_lg_u32 s3, {NW4-1}
    s_cbranch_scc1 K4_END''')
    g('v_lshlrev_b32 v126, 2, v0\nv_lshlrev_b32 v127, 1, v0\nv_mov_b32 v132, 0x7fff0000\nv_cmp_lt_u32 vcc, 63, v0\ns_nop 1\nv_cndmask_b32 v128, v126, v132, vcc\nv_cndmask_b32 v129, v127, v132, vcc')
    for rep in range(NREP):
        g(f's_mov_b32 s3, {rep*4608}\ns_mov_b32 s56, {rep*4608+2304}')
        for j in range(3):
            for tok in range(2):
                g(f'buffer_load_dword v{10+6*rep+2*j+tok}, v{126 if j<2 else 128}, s[44:47], s{3 if tok==0 else 56} offen offset:{1024*j} sc0 sc1')
    for tok, sk in ((0, 52), (1, 53)):
        g(f'''s_and_b32 s3, s{sk}, 0xffff0000
        s_ashr_i32 s56, s3, 31
        s_not_b32 s56, s56
        s_or_b32 s56, s56, 0x80000000
        s_xor_b32 s3, s3, s56
        s_and_b32 s3, s3, 0xffff0000
        v_mov_b32 v{130+tok}, s3
        v_mul_f32 v{130+tok}, {fl(-1/math.log(2))}, v{130+tok}
        v_exp_f32 v{130+tok}, v{130+tok}
        s_nop 0
        v_add_f32 v{130+tok}, 1.0, v{130+tok}
        v_rcp_f32 v{130+tok}, v{130+tok}
        s_nop 0''')
        g.rbf(130 + tok)
    g('s_waitcnt vmcnt(0)')
    for j in range(3):
        for tok in range(2):
            a = 10 + 2 * j + tok
            for rep in range(1, NREP): g(f'v_add_f32 v{a}, v{a}, v{10+6*rep+2*j+tok}')
            g.rbf(a)
            g(f'v_mul_f32 v{a}, v{a}, v{130+tok}')
            g.rbf(a)
            g(f'v_add_f32 v{a}, v{a}, v{KY+6+2*j+tok}')
            g.rbf(a)
            g(f'v_add_f32 v{a}, v{a}, v{KY+2*j+tok}\nv_cvt_pk_bf16_f32 v{a}, v{a}, v{a}')
            g(f'buffer_store_short v{a}, v{127 if j<2 else 129}, s[28:31], s{54+tok} offen offset:{512*j}')
    g.lab('K4_END')
    g('s_endpgm')
    return g.text(), 224
```

```python
import sys
from gen_common import *
from gen_k1 import k1
from gen_k2 import k2
from gen_k3 import k3
ks = [('fa_kernel', k1, 552, 13824), ('fb_kernel', k2, 440, 8704), ('fc_kernel', k3, 400, 41472)]
out = '; generated by work/gen.py (hand-written generator)\n'
for n, f, gr, lds in ks: out += f'; @launch kernel={n} grid=({gr},1,1) block=(256,1,1) lds={lds}\n'
out += '.amdgcn_target "amdgcn-amd-amdhsa--gfx950"\n.text\n'
ds = ''
for n, f, gr, lds in ks:
    t, vg = f()
    out += header(n) + t
    ds += desc(n, vg)
out += '.section .rodata,"a"\n' + ds
open(sys.argv[1] if len(sys.argv) > 1 else 'sequential_preLN__spectral_gfnet__moe_arch_mod__prompt.s', 'w').write(out)
```

```python
import math, struct, os
STAMP = int(os.environ.get('STAMP', '0'))
def f2u(x): return struct.unpack('<I', struct.pack('<f', x))[0]
def fl(x): return '0x%08x' % f2u(x)
XT_OFF, WT_OFF, YT_OFF, H_OFF = 0x0, 0x250000, 0x4A0000, 0x6F0000
KEY_OFF, WMAX_OFF, ACC_OFF, STAT_OFF = 0x940000, 0x942000, 0x944000, 0x950000
COLB = 289 * 8192
NREP = 8
class G:
    def __init__(s): s.L = []; s.ns = 0
    def __call__(s, t):
        for l in t.strip('\n').split('\n'): s.L.append('    ' + l.strip())
    def stamp(s):
        if not STAMP: return
        n = s.ns; s.ns += 1
        s(f's_memrealtime s[{64+2*n}:{65+2*n}]')
    def stamp_out(s, kidx, wsp):
        if not STAMP: return
        s.stamp()
        s('s_waitcnt lgkmcnt(0)\ns_mov_b64 exec, -1')
        for n in range(s.ns): s(f'v_writelane_b32 v250, s{64+2*n}, {n}')
        s.srd(64, wsp, 4 * 512 * 64, 0xA00000)
        s(f's_lshl_b32 s68, s2, 6\ns_add_u32 s68, s68, {kidx*512*64}\nv_lshlrev_b32 v251, 2, v0\nv_cmp_gt_u32 vcc, 16, v0\ns_and_saveexec_b64 s[70:71], vcc\ns_cbranch_execz SO{kidx}_{s.ns}_{len(s.L)}\nbuffer_store_dword v250, v251, s[64:67], s68 offen')
        s.lab(f'SO{kidx}_{s.ns}_{len(s.L)-7}')
    def lab(s, n): s.L.append(n + ':')
    def text(s): return '\n'.join(s.L) + '\n'
    def srd(s, d, p, size, off=0):
        if off:
            s(f's_add_u32 s{d}, s{p}, {hex(off)}\ns_addc_u32 s{d+1}, s{p+1}, 0')
        else:
            s(f's_mov_b32 s{d}, s{p}\ns_mov_b32 s{d+1}, s{p+1}')
        s(f's_mov_b32 s{d+2}, {hex(size)}\ns_mov_b32 s{d+3}, 0x20000')
    def red32(s, v, t, op='v_add_f32'):
        for p in ['quad_perm:[1,0,3,2]', 'quad_perm:[2,3,0,1]', 'row_half_mirror', 'row_mirror']:
            s(f's_nop 1\n{op}_dpp v{v}, v{v}, v{v} {p} row_mask:0xf bank_mask:0xf')
        s(f'ds_swizzle_b32 v{t}, v{v} offset:0x401F\ns_waitcnt lgkmcnt(0)\n{op} v{v}, v{v}, v{t}')
    def red64_to_s(s, v, t, sd, st, op='v_max_u32', sop='s_max_u32'):
        s.red32(v, t, op)
        s(f's_nop 1\nv_readlane_b32 s{sd}, v{v}, 0\nv_readlane_b32 s{st}, v{v}, 32\ns_nop 3\n{sop} s{sd}, s{sd}, s{st}')
    def rbf(s, a, b=None):
        if b is None:
            s(f'v_cvt_pk_bf16_f32 v{a}, v{a}, v{a}\nv_lshlrev_b32 v{a}, 16, v{a}')
        else:
            s(f'v_cvt_pk_bf16_f32 v{b}, v{a}, v{b}\nv_lshlrev_b32 v{a}, 16, v{b}\nv_and_b32 v{b}, 0xffff0000, v{b}')
    def sincos(s, c, sn, ang, scale=None):
        s(f'v_cos_f32 v{c}, v{ang}\nv_sin_f32 v{sn}, v{ang}')
        if scale is not None:
            s(f's_nop 0\nv_mul_f32 v{c}, {scale}, v{c}\nv_mul_f32 v{sn}, {scale}, v{sn}')
    def ln_stats(s, x, n, vm, vr, t, t2):
        s(f'v_add_f32 v{vm}, v{x}, v{x+1}')
        for i in range(2, n): s(f'v_add_f32 v{vm}, v{vm}, v{x+i}')
        s.red32(vm, t)
        s(f'v_mul_f32 v{vm}, {fl(1/576)}, v{vm}')
        s(f'v_sub_f32 v{t2}, v{x}, v{vm}\nv_mul_f32 v{vr}, v{t2}, v{t2}')
        for i in range(1, n): s(f'v_sub_f32 v{t2}, v{x+i}, v{vm}\nv_fmac_f32 v{vr}, v{t2}, v{t2}')
        s.red32(vr, t)
        s(f'v_mul_f32 v{vr}, {fl(1/576)}, v{vr}')
        s.rbf(vm, vr)
        s(f'v_add_f32 v{vr}, {fl(1e-5)}, v{vr}')
        s.rbf(vr)
        s(f'v_sqrt_f32 v{vr}, v{vr}\ns_nop 0')
        s.rbf(vr)
        s(f'v_rcp_f32 v{vr}, v{vr}\ns_nop 0')
    def ln_apply(s, x, o, n, vm, vr):
        for i in range(0, n, 2):
            a, b = o + i, o + i + 1
            s(f'v_sub_f32 v{a}, v{x+i}, v{vm}\nv_sub_f32 v{b}, v{x+i+1}, v{vm}')
            s.rbf(a, b)
            s(f'v_mul_f32 v{a}, v{a}, v{vr}\nv_mul_f32 v{b}, v{b}, v{vr}')
            s.rbf(a, b)
    def wscale_load(s, v, lane, srd):
        s(f'v_mul_u32_u24 v{v+12}, 48, v{lane}')
        for i in range(3): s(f'buffer_load_dwordx4 v[{v+4*i}:{v+4*i+3}], v{v+12}, s[{srd}:{srd+3}], 0 offen offset:{16*i}')
    def wscale_reduce(s, v, sE, st):
        s(f'v_max3_u32 v{v}, v{v}, v{v+1}, v{v+2}')
        for i in range(3, 11, 2): s(f'v_max3_u32 v{v}, v{v}, v{v+i}, v{v+i+1}')
        s(f'v_max_u32 v{v}, v{v}, v{v+11}')
        s.red64_to_s(v, v + 1, sE, st)
        s(f's_lshr_b32 s{sE}, s{sE}, 7\ns_max_u32 s{sE}, s{sE}, 1\ns_min_u32 s{sE}, s{sE}, 253')
def header(name): return f'.globl {name}\n.p2align 8\n.type {name},@function\n{name}:\n'
def desc(name, vg, sg=64):
    if STAMP: vg, sg = 256, 100
    vg4 = (vg + 3) // 4 * 4
    return f'''.p2align 6
.amdhsa_kernel {name}
  .amdhsa_next_free_vgpr {vg4}
  .amdhsa_next_free_sgpr {sg}
  .amdhsa_accum_offset {vg4}
  .amdhsa_group_segment_fixed_size 0
  .amdhsa_kernarg_size 88
  .amdhsa_user_sgpr_count 2
  .amdhsa_user_sgpr_kernarg_segment_ptr 1
  .amdhsa_system_sgpr_workgroup_id_x 1
.end_amdhsa_kernel
'''
C18 = lambda m: math.cos(2 * math.pi * m / 18)
S18 = lambda m: math.sin(2 * math.pi * m / 18)
```

```python
from gen_common import *
def k1():
    g = G()
    g('''s_cmp_ge_u32 s2, 401
    s_cbranch_scc1 K1_END
    s_load_dwordx4 s[4:7], s[0:1], 0
    s_load_dwordx2 s[8:9], s[0:1], 16
    s_load_dwordx2 s[10:11], s[0:1], 80
    s_cmp_ge_u32 s2, 256
    s_cbranch_scc1 K1_TR
    s_and_b32 s3, s2, 7
    s_lshl_b32 s3, s3, 5
    s_lshr_b32 s12, s2, 3
    s_add_u32 s3, s3, s12''')
    g('''v_lshrrev_b32 v1, 5, v0
    v_and_b32 v2, 31, v0
    s_and_b32 s12, s3, 7
    s_lshl_b32 s12, s12, 3
    v_add_u32 v3, s12, v1
    v_lshlrev_b32 v3, 5, v3
    s_lshr_b32 s12, s3, 3
    v_add_u32 v3, s12, v3
    v_mul_u32_u24 v3, 1152, v3
    v_lshl_add_u32 v3, v2, 1, v3
    s_waitcnt lgkmcnt(0)''')
    g.srd(16, 4, 2048 * 1152)
    g.srd(20, 10, COLB, XT_OFF)
    X = 10
    g.stamp()
    for d2 in range(18): g(f'buffer_load_ushort v{X+d2}, v3, s[16:19], 0 offen offset:{64*d2}')
    g('v_cvt_f32_u32 v4, v2')
    for k in range(1, 10):
        g(f'v_mul_f32 v5, {fl(k/576)}, v4')
        g.sincos(28 + 2 * k, 29 + 2 * k, 5, fl(1 / math.sqrt(18)))
    g('''v_lshrrev_b32 v6, 6, v0
    v_and_b32 v7, 63, v0
    s_nop 0
    v_readfirstlane_b32 s13, v6
    v_and_b32 v8, 15, v7
    v_lshrrev_b32 v9, 4, v7
    s_and_b32 s14, s13, 1
    s_lshl_b32 s15, s14, 4
    v_add_u32 v64, s15, v8
    v_cvt_f32_u32 v65, v64
    v_mul_f32 v65, 0x3d000000, v65
    v_lshlrev_b32 v66, 2, v9
    v_cvt_f32_u32 v66, v66
    s_mul_i32 s15, s14, 0x80008000
    v_and_b32 v67, 1, v8
    v_mul_u32_u24 v67, 0x8000, v67
    v_lshl_or_b32 v67, v67, 16, v67''')
    for jj in range(4):
        g(f'v_add_f32 v5, {float(jj)}, v66\nv_mul_f32 v5, v5, v65')
        g.sincos(68, 69, 5, fl(1 / math.sqrt(32)))
        g(f'''v_cvt_pk_f16_f32 v{48+jj}, v68, v69
        v_cvt_pk_f16_f32 v{56+jj}, -v69, v68
        v_xor_b32 v{56+jj}, s15, v{56+jj}
        v_xor_b32 v{52+jj}, v67, v{48+jj}
        v_xor_b32 v{60+jj}, v67, v{56+jj}''')
    g.stamp()
    g('s_waitcnt vmcnt(0)')
    g.stamp()
    for d2 in range(18): g(f'v_lshlrev_b32 v{X+d2}, 16, v{X+d2}')
    g.ln_stats(X, 18, 70, 71, 72, 73)
    g.ln_apply(X, X, 18, 70, 71)
    A, B = 74, 82
    for j in range(1, 9):
        g(f'v_add_f32 v{A+j-1}, v{X+j}, v{X+18-j}\nv_sub_f32 v{B+j-1}, v{X+j}, v{X+18-j}')
    AP, AM, BP, BM = 90, 94, 98, 102
    for j in range(1, 5):
        g(f'''v_add_f32 v{AP+j-1}, v{A+j-1}, v{A+9-j-1}
        v_sub_f32 v{AM+j-1}, v{A+j-1}, v{A+9-j-1}
        v_add_f32 v{BP+j-1}, v{B+j-1}, v{B+9-j-1}
        v_sub_f32 v{BM+j-1}, v{B+j-1}, v{B+9-j-1}''')
    g(f'v_add_f32 v106, v{X}, v{X+9}\nv_sub_f32 v107, v{X}, v{X+9}')
    g('v_mul_u32_u24 v3, 144, v1\nv_lshl_add_u32 v3, v2, 2, v3')
    for k in range(10):
        a, bb, e = (AP, BM, 106) if k % 2 == 0 else (AM, BP, 107)
        g(f'v_fmamk_f32 v74, v{a}, {fl(C18(k))}, v{e}')
        for j in range(2, 5): g(f'v_fmac_f32 v74, {fl(C18(j*k))}, v{a+j-1}')
        c, s_ = 28 + 2 * k, 29 + 2 * k
        if k == 0:
            g(f'v_mul_f32 v74, {fl(1/math.sqrt(18))}, v74\nv_cvt_pk_f16_f32 v78, v74, 0')
        elif k == 9:
            g(f'v_mul_f32 v76, v74, v{c}\nv_mul_f32 v77, v74, v{s_}\nv_cvt_pk_f16_f32 v78, v76, -v77')
        else:
            g(f'v_mul_f32 v75, {fl(-S18(k))}, v{bb}')
            for j in range(2, 5): g(f'v_fmac_f32 v75, {fl(-S18(j*k))}, v{bb+j-1}')
            g(f'''v_mul_f32 v76, v74, v{c}
            v_mul_f32 v77, v75, v{c}
            v_fmac_f32 v76, v75, v{s_}
            v_fma_f32 v77, -v74, v{s_}, v77
            v_cvt_pk_f16_f32 v78, v76, v77''')
        g(f'ds_write_b32 v3, v78 offset:{k*1152}')
    g.stamp()
    g('''s_lshr_b32 s12, s13, 1
    s_mul_i32 s12, s12, 6912
    v_mul_u32_u24 v3, 144, v8
    v_lshl_add_u32 v3, v9, 4, v3
    v_add_u32 v3, s12, v3
    s_waitcnt lgkmcnt(0)
    s_barrier''')
    for i in range(3):
        for t in range(2): g(f'ds_read_b128 v[{10+8*i+4*t}:{13+8*i+4*t}], v3 offset:{i*2304+t*64}')
    g('''s_lshr_b32 s12, s13, 1
    s_mul_i32 s12, s12, 6
    v_lshrrev_b32 v4, 1, v9
    v_add_u32 v4, s12, v4
    v_mul_u32_u24 v5, 18, v64
    v_and_b32 v6, 1, v9
    s_lshl_b32 s12, s3, 1
    v_add_u32 v6, s12, v6
    v_lshlrev_b32 v6, 4, v6
    v_mov_b32 v7, 0x7fffff00''')
    for i in range(3):
        g(f's_waitcnt lgkmcnt({4-2*i})')
        for (D, T) in ((74 + 8 * i, 48), (78 + 8 * i, 56)):
            g(f'v_mfma_f32_16x16x32_f16 v[{D}:{D+3}], v[{10+8*i}:{13+8*i}], v[{T}:{T+3}], 0')
            g(f'v_mfma_f32_16x16x32_f16 v[{D}:{D+3}], v[{14+8*i}:{17+8*i}], v[{T+4}:{T+7}], v[{D}:{D+3}]')
    for i in range(3):
        g(f'''v_add_u32 v36, {2*i}, v4
        v_add_u32 v37, v5, v36
        v_sub_u32 v38, 576, v37
        s_cmp_eq_u32 s14, 1
        s_cselect_b64 vcc, -1, 0
        v_cndmask_b32 v37, v37, v38, vcc
        v_lshl_add_u32 v39, v37, 13, v6
        v_cmp_lt_u32 vcc, 9, v36
        s_nop 1
        v_cndmask_b32 v39, v39, v7, vcc''')
        g(f'''v_cmp_eq_u32 s[24:25], 9, v36
        v_cmp_eq_u32 s[26:27], 0, v36
        v_cmp_ne_u32 vcc, 0x120, v37
        s_nop 1
        s_and_b64 s[26:27], s[26:27], vcc
        s_or_b64 s[24:25], s[24:25], s[26:27]
        s_cmp_eq_u32 s14, 1
        s_cselect_b64 vcc, s[24:25], 0
        v_cndmask_b32 v{40+i}, v39, v7, vcc''')
    g.stamp()
    g('s_nop 7')
    for i in range(3):
        D = 74 + 8 * i
        g(f'''v_cvt_pk_f16_f32 v{D}, v{D}, v{D+1}
        v_cvt_pk_f16_f32 v{D+1}, v{D+2}, v{D+3}
        v_cvt_pk_f16_f32 v{D+2}, v{D+4}, v{D+5}
        v_cvt_pk_f16_f32 v{D+3}, v{D+6}, v{D+7}
        buffer_store_dwordx4 v[{D}:{D+3}], v{40+i}, s[20:23], 0 offen''')
    g.stamp_out(0, 10)
    g('s_endpgm')
    g.ns = 0
    g.lab('K1_TR')
    g(f'''s_sub_u32 s3, s2, 256
    s_lshl_b32 s12, s3, 8
    v_add_u32 v1, s12, v0
    s_mov_b32 s12, {(2**32 + 288)//289}
    v_mul_hi_u32 v2, v1, s12
    v_mul_u32_u24 v3, 289, v2
    v_sub_u32 v3, v1, v3
    v_and_b32 v4, 63, v2
    v_lshrrev_b32 v5, 6, v2
    v_lshl_add_u32 v6, v5, 10, v4
    v_mul_u32_u24 v6, 578, v6
    v_lshl_add_u32 v6, v3, 1, v6
    s_waitcnt lgkmcnt(0)''')
    g.srd(16, 6, 2048 * 578)
    g.srd(20, 8, 2048 * 578)
    g.srd(24, 10, COLB, WT_OFF)
    g.srd(28, 10, 580 * 4, WMAX_OFF)
    g.srd(32, 10, NREP * 1152 * 4, ACC_OFF)
    g.srd(36, 10, 8192, KEY_OFF)
    g.stamp()
    for q in range(16):
        g(f's_mov_b32 s13, {q*36992}')
        g(f'buffer_load_ushort v{10+q}, v6, s[16:19], s13 offen\nbuffer_load_ushort v{30+q}, v6, s[20:23], s13 offen')
    g('''v_lshrrev_b32 v7, 4, v4
    v_lshlrev_b32 v7, 6, v7
    v_and_b32 v8, 15, v4
    v_add_u32 v7, v7, v8
    v_lshlrev_b32 v7, 5, v7
    v_lshl_add_u32 v7, v5, 4, v7
    v_lshl_add_u32 v7, v3, 13, v7
    v_mov_b32 v8, 0x7fff0000
    v_cmp_le_u32 vcc, 0x9080, v1
    v_mov_b32 v50, 0
    v_mov_b32 v51, 0
    v_cndmask_b32 v7, v7, v8, vcc
    v_mov_b32 v52, 0
    v_mov_b32 v53, 0
    v_lshlrev_b32 v9, 4, v1
    buffer_store_dwordx4 v[50:53], v9, s[32:35], 0 offen
    v_subrev_u32 v9, 0x9000, v9
    buffer_store_dwordx4 v[50:53], v9, s[36:39], 0 offen
    s_waitcnt vmcnt(2)''')
    for q in range(16):
        g(f'v_max_u32 v50, v50, v{10+q}' if False else f'v_lshl_or_b32 v{10+q}, v{30+q}, 16, v{10+q}')
    g.stamp()
    g('v_and_b32 v54, 0x7fff7fff, v10')
    for q in range(1, 16): g(f'v_and_b32 v55, 0x7fff7fff, v{10+q}\nv_pk_max_u16 v54, v54, v55')
    for gg in range(4): g(f'buffer_store_dwordx4 v[{10+4*gg}:{13+4*gg}], v7, s[24:27], 0 offen offset:{512*gg}')
    g('v_lshrrev_b32 v55, 16, v54\nv_and_b32 v54, 0xffff, v54\nv_max_u32 v54, v54, v55')
    g.red64_to_s(54, 55, 13, 14)
    g('''v_lshrrev_b32 v56, 6, v0
    s_lshl_b32 s14, s3, 2
    v_add_lshl_u32 v56, v56, s14, 2
    v_mov_b32 v57, s13
    v_and_b32 v58, 63, v0
    v_cmp_eq_u32 vcc, 0, v58
    s_and_saveexec_b64 s[14:15], vcc
    buffer_store_dword v57, v56, s[28:31], 0 offen''')
    g.stamp_out(0, 10)
    g.lab('K1_END')
    g('s_endpgm')
    return g.text(), 108
```

```python
from gen_common import *
def mf(g, D, A, B, first):
    g(f'v_mfma_f32_16x16x32_f16 v[{D}:{D+3}], v[{A}:{A+3}], v[{B}:{B+3}], ' + ('0' if first else f'v[{D}:{D+3}]'))
def pack4(g, O, R, I, negI=False):
    n = '-' if negI else ''
    g(f'''v_cvt_pk_f16_f32 v{O}, v{R}, v{R+1}
    v_cvt_pk_f16_f32 v{O+1}, v{R+2}, v{R+3}
    v_cvt_pk_f16_f32 v{O+2}, {n}v{I}, {n}v{I+1}
    v_cvt_pk_f16_f32 v{O+3}, {n}v{I+2}, {n}v{I+3}''')
def twid(g, R, I, TW, t):
    for r in range(4):
        c, s_ = TW + 2 * r, TW + 2 * r + 1
        g(f'''v_mul_f32 v{t}, v{R+r}, v{s_}
        v_mul_f32 v{R+r}, v{R+r}, v{c}
        v_fmac_f32 v{R+r}, v{I+r}, v{s_}
        v_fma_f32 v{I+r}, v{I+r}, v{c}, -v{t}''')
def k2():
    g = G()
    g('''s_cmp_ge_u32 s2, 289
    s_cbranch_scc1 K2_PF
    s_load_dwordx2 s[10:11], s[0:1], 80
    v_lshrrev_b32 v6, 6, v0
    v_and_b32 v7, 63, v0
    v_and_b32 v8, 15, v0
    v_readfirstlane_b32 s13, v6
    v_lshrrev_b32 v9, 4, v7
    s_lshl_b32 s3, s2, 13
    v_lshlrev_b32 v1, 8, v8
    v_lshl_add_u32 v1, v9, 4, v1
    v_lshlrev_b32 v2, 5, v0
    s_waitcnt lgkmcnt(0)''')
    g.srd(16, 10, COLB, XT_OFF); g.srd(20, 10, COLB, WT_OFF); g.srd(24, 10, COLB, YT_OFF); g.srd(28, 10, 580 * 4, WMAX_OFF)
    A = 10
    g.stamp()
    g('v_add_u32 v3, 0x1000, v1')
    for mt in range(2):
        for t in range(4):
            g(f'buffer_load_dwordx4 v[{A+16*mt+4*t}:{A+16*mt+4*t+3}], v{1 if mt==0 else 3}, s[16:19], s3 offen offset:{64*t}')
    W = 42
    g(f'buffer_load_dwordx4 v[42:45], v2, s[20:23], s3 offen\nbuffer_load_dwordx4 v[46:49], v2, s[20:23], s3 offen offset:16')
    g.wscale_load(148, 7, 28)
    BRE, BIM, ARE, AIM, TW1, TW2 = 50, 66, 82, 98, 114, 130
    g('''s_lshl_b32 s14, s13, 4
    v_add_u32 v4, s14, v8
    v_cvt_f32_u32 v4, v4
    v_lshlrev_b32 v5, 2, v9
    v_cvt_f32_u32 v5, v5
    v_and_b32 v146, 1, v8
    v_mul_u32_u24 v146, 0x8000, v146
    v_lshl_or_b32 v146, v146, 16, v146
    v_mul_f32 v147, 0x3c800000, v4''')
    T = 162
    for t in range(2):
        for j in range(4):
            g(f'v_add_f32 v170, {float(16*t+j)}, v5\nv_mul_f32 v170, v170, v147')
            g.sincos(T + j, T + 4 + j, 170, '0x3e000000')
        g(f'''v_cvt_pk_f16_f32 v{BRE+4*t}, v{T}, v{T+1}
        v_cvt_pk_f16_f32 v{BRE+4*t+1}, v{T+2}, v{T+3}
        v_cvt_pk_f16_f32 v{BRE+4*t+2}, v{T+4}, v{T+5}
        v_cvt_pk_f16_f32 v{BRE+4*t+3}, v{T+6}, v{T+7}
        v_xor_b32 v{BIM+4*t}, 0x80008000, v{BRE+4*t+2}
        v_xor_b32 v{BIM+4*t+1}, 0x80008000, v{BRE+4*t+3}
        v_mov_b32 v{BIM+4*t+2}, v{BRE+4*t}
        v_mov_b32 v{BIM+4*t+3}, v{BRE+4*t+1}''')
        for j in range(4):
            g(f'v_xor_b32 v{BRE+4*(t+2)+j}, v146, v{BRE+4*t+j}\nv_xor_b32 v{BIM+4*(t+2)+j}, v146, v{BIM+4*t+j}')
    g('v_cvt_f32_u32 v171, v8\nv_mul_f32 v147, 0x3d000000, v171')
    for j in range(4):
        g(f'v_add_f32 v170, {float(j)}, v5\nv_mul_f32 v170, v170, v147')
        g.sincos(T + j, T + 4 + j, 170, fl(1 / math.sqrt(32)))
    g(f'''v_cvt_pk_f16_f32 v{ARE}, v{T}, v{T+1}
    v_cvt_pk_f16_f32 v{ARE+1}, v{T+2}, v{T+3}
    v_cvt_pk_f16_f32 v{ARE+2}, v{T+4}, v{T+5}
    v_cvt_pk_f16_f32 v{ARE+3}, v{T+6}, v{T+7}
    v_xor_b32 v{AIM}, 0x80008000, v{ARE+2}
    v_xor_b32 v{AIM+1}, 0x80008000, v{ARE+3}
    v_mov_b32 v{AIM+2}, v{ARE}
    v_mov_b32 v{AIM+3}, v{ARE+1}''')
    for B_ in (ARE, AIM):
        for j in range(4):
            g(f'''v_xor_b32 v{B_+4+j}, v146, v{B_+j}
            v_xor_b32 v{B_+8+j}, 0x80000000, v{B_+j}
            v_xor_b32 v{B_+12+j}, 0x80000000, v{B_+4+j}''')
    g('v_mul_f32 v147, 0x3a000000, v4')
    for mt in range(2):
        for r in range(4):
            g(f'v_add_f32 v170, {float(16*mt+r)}, v5\nv_mul_f32 v170, v170, v147')
            g.sincos(TW1 + 8 * mt + 2 * r, TW1 + 8 * mt + 2 * r + 1, 170)
    g('v_cvt_f32_u32 v169, s14\nv_add_f32 v169, v169, v5')
    for st in range(2):
        g(f'v_add_f32 v147, {float(16*st)}, v171\nv_mul_f32 v147, 0x3a000000, v147')
        for r in range(4):
            g(f'v_add_f32 v170, {float(r)}, v169\nv_mul_f32 v170, v170, v147')
            g.sincos(TW2 + 8 * st + 2 * r, TW2 + 8 * st + 2 * r + 1, 170)
    g(f'''s_mul_i32 s14, s2, {(65536+17)//18}
    s_lshr_b32 s14, s14, 16
    s_mul_i32 s14, s14, 18
    s_sub_u32 s14, s2, s14
    s_mov_b32 s15, 1.0
    s_cmp_eq_u32 s14, 0
    s_cselect_b32 s15, 2.0, s15
    s_cmp_eq_u32 s14, 9
    s_cselect_b32 s15, 2.0, s15
    s_cmp_eq_u32 s2, 0
    s_cselect_b32 s15, 1.0, s15
    s_cmp_eq_u32 s2, 288
    s_cselect_b32 s15, 1.0, s15
    v_mul_u32_u24 v1, 272, v8
    v_lshl_add_u32 v1, v9, 4, v1
    s_lshl_b32 s14, s13, 6
    v_add_u32 v2, s14, v1
    s_lshl_b32 s14, s13, 11
    v_lshlrev_b32 v3, 7, v8
    v_lshl_add_u32 v3, v9, 4, v3
    v_add_u32 v3, s14, v3''')
    C = 172
    g.stamp()
    g('s_waitcnt vmcnt(5)')
    g.stamp()
    for mt in range(2):
        for t in range(4):
            mf(g, C + 4 * mt, A + 16 * mt + 4 * t, BRE + 4 * t, t == 0)
            mf(g, C + 8 + 4 * mt, A + 16 * mt + 4 * t, BIM + 4 * t, t == 0)
    g('s_waitcnt vmcnt(0)')
    g.wscale_reduce(148, 32, 33)
    g('s_sub_u32 s33, 254, s32\ns_lshl_b32 s33, s33, 23')
    D1 = 10
    for mt in range(2):
        twid(g, C + 4 * mt, C + 8 + 4 * mt, TW1 + 8 * mt, 170)
        pack4(g, D1 + 4 * mt, C + 4 * mt, C + 8 + 4 * mt)
    for i in range(8):
        g(f'''v_lshlrev_b32 v{148+2*i}, 16, v{W+i}
        v_and_b32 v{149+2*i}, 0xffff0000, v{W+i}
        v_mul_f32 v{148+2*i}, s33, v{148+2*i}
        v_mul_f32 v{149+2*i}, s33, v{149+2*i}''')
    for kt in range(2):
        for t in range(2):
            mf(g, C + 4 * kt, ARE + 8 * kt + 4 * t, D1 + 4 * t, t == 0)
            mf(g, C + 8 + 4 * kt, AIM + 8 * kt + 4 * t, D1 + 4 * t, t == 0)
    g('s_nop 7')
    D2 = 18
    for kt in range(2):
        for r in range(4):
            xr, xi, wr, wi = C + 4 * kt + r, C + 8 + 4 * kt + r, 148 + 2 * (4 * kt + r), 149 + 2 * (4 * kt + r)
            g(f'''v_mul_f32 v170, v{xr}, v{wi}
            v_mul_f32 v{xr}, v{xr}, v{wr}
            v_fma_f32 v{xr}, -v{xi}, v{wi}, v{xr}
            v_fma_f32 v{xi}, v{xi}, v{wr}, v170''')
        pack4(g, D2 + 4 * kt, C + 4 * kt, C + 8 + 4 * kt, True)
    g('s_nop 1')
    for st in range(2):
        for kt in range(2):
            mf(g, C + 4 * st, D2 + 4 * kt, ARE + 8 * st + 4 * kt, kt == 0)
            mf(g, C + 8 + 4 * st, D2 + 4 * kt, AIM + 8 * st + 4 * kt, kt == 0)
    g('s_nop 7')
    for st in range(2):
        twid(g, C + 4 * st, C + 8 + 4 * st, TW2 + 8 * st, 170)
        pack4(g, D1 + 4 * st, C + 4 * st, C + 8 + 4 * st)
        g(f'ds_write_b128 v2, v[{D1+4*st}:{D1+4*st+3}] offset:{16*272*st}')
    g.stamp()
    g('s_waitcnt lgkmcnt(0)\ns_barrier')
    g.stamp()
    for st in range(2):
        for t in range(4):
            g(f'ds_read_b128 v[{A+16*st+4*t}:{A+16*st+4*t+3}], v1 offset:{16*272*st+64*t}')
    for st in range(2):
        for t in range(4):
            g(f's_waitcnt lgkmcnt({7-4*st-t})')
            mf(g, C + 4 * st, A + 16 * st + 4 * t, BRE + 4 * t, t == 0)
            mf(g, C + 8 + 4 * st, A + 16 * st + 4 * t, BIM + 4 * t, t == 0)
    g('s_nop 7')
    for st in range(2):
        for r in range(4):
            g(f'''v_mul_f32 v{C+4*st+r}, s15, v{C+4*st+r}
            v_mul_f32 v{C+8+4*st+r}, s15, v{C+8+4*st+r}
            v_cvt_pk_f16_f32 v{C+4*st+r}, v{C+4*st+r}, -v{C+8+4*st+r}''')
        g(f'buffer_store_dwordx4 v[{C+4*st}:{C+4*st+3}], v3, s[24:27], s3 offen offset:{64*st}')
    g.stamp_out(1, 10)
    g.lab('K2_END')
    g('s_endpgm')
    g.lab('K2_PF')
    pref(g, 296, PF2, 'K2_END')
    return g.text(), 188
```

```python
from gen_common import *
from gen_k4 import moe
def k3():
    g = G()
    g('''s_cmp_ge_u32 s2, 256
    s_cbranch_scc1 MOE
    s_load_dwordx2 s[4:5], s[0:1], 0
    s_load_dwordx2 s[6:7], s[0:1], 32
    s_load_dwordx2 s[8:9], s[0:1], 64
    s_load_dwordx2 s[10:11], s[0:1], 80
    s_and_b32 s3, s2, 7
    s_lshl_b32 s3, s3, 5
    s_lshr_b32 s12, s2, 3
    s_add_u32 s3, s3, s12
    v_lshrrev_b32 v1, 5, v0
    v_and_b32 v2, 31, v0
    v_lshrrev_b32 v6, 6, v0
    v_and_b32 v7, 63, v0
    v_and_b32 v8, 15, v0
    v_readfirstlane_b32 s13, v6
    v_lshrrev_b32 v9, 4, v7
    s_lshl_b32 s12, s3, 3
    v_add_u32 v3, s12, v1
    v_mul_u32_u24 v3, 1152, v3
    v_lshl_add_u32 v3, v2, 1, v3
    v_lshlrev_b32 v4, 1, v2
    v_lshrrev_b32 v5, 1, v0
    v_lshlrev_b32 v5, 13, v5
    v_and_b32 v110, 1, v0
    v_lshl_add_u32 v5, v110, 4, v5
    s_lshl_b32 s14, s3, 5
    s_waitcnt lgkmcnt(0)''')
    g.srd(16, 4, 2048 * 1152); g.srd(20, 6, 1152); g.srd(24, 8, 2048 * 1152)
    g.srd(28, 10, COLB, YT_OFF); g.srd(32, 10, 580 * 4, WMAX_OFF); g.srd(36, 10, 2048 * 1152, H_OFF)
    g.srd(40, 10, 8192, KEY_OFF); g.srd(44, 10, 2048 * 8, STAT_OFF)
    Y = 10
    g.stamp()
    for i in range(3):
        g(f's_add_u32 s15, s14, {i*128*8192}\nbuffer_load_dwordx4 v[{Y+4*i}:{Y+4*i+3}], v5, s[28:31], s15 offen')
    g.wscale_load(112, 7, 32)
    X, WR = 22, 40
    for d2 in range(18): g(f'buffer_load_ushort v{X+d2}, v3, s[16:19], 0 offen offset:{64*d2}')
    for d2 in range(18): g(f'buffer_load_ushort v{WR+d2}, v4, s[20:23], 0 offen offset:{64*d2}')
    g('''v_lshrrev_b32 v58, 7, v0
    v_mul_u32_u24 v58, 72, v58
    v_bfe_u32 v59, v0, 4, 3
    v_add_u32 v58, v58, v59
    v_mul_u32_u24 v58, 144, v58
    v_lshl_add_u32 v59, v8, 2, 64
    v_and_b32 v60, 0x8f, v0
    v_cmp_eq_u32 vcc, 0, v60
    v_mov_b32 v60, 0x80
    v_mov_b32 v61, 0
    v_cndmask_b32 v59, v59, v60, vcc
    v_add_u32 v58, v58, v59
    ds_write_b32 v58, v61''')
    for i in range(3):
        g(f'''v_lshrrev_b32 v64, 1, v0
        v_add_u32 v64, {128*i}, v64
        v_min_u32 v64, 0x121, v64
        v_mul_u32_u24 v65, {(65536+17)//18}, v64
        v_lshrrev_b32 v65, 16, v65
        v_mul_u32_u24 v66, 18, v65
        v_sub_u32 v66, v64, v66
        v_cmp_lt_u32 vcc, 9, v66
        v_sub_u32 v67, 18, v66
        v_sub_u32 v68, 31, v65
        v_cndmask_b32 v66, v66, v67, vcc
        v_cndmask_b32 v65, v65, v68, vcc
        v_mov_b32 v67, 0x80000000
        v_cndmask_b32 v{61+i}, 0, v67, vcc
        v_lshlrev_b32 v66, 1, v66
        v_add_u32 v66, v66, v110
        v_mul_u32_u24 v66, 576, v66
        v_lshl_add_u32 v{58+i}, v65, 2, v66''')
    g('''v_cmp_lt_u32 vcc, 65, v0
    v_mov_b32 v64, 0x84
    s_nop 0
    v_cndmask_b32 v60, v60, v64, vcc''')
    g('''v_lshrrev_b32 v64, 2, v8
    v_lshlrev_b32 v64, 1, v64
    v_bfe_u32 v65, v8, 1, 1
    v_add_u32 v64, v64, v65
    s_lshl_b32 s12, s13, 3
    v_add_u32 v64, s12, v64
    v_mul_u32_u24 v65, 0x8000, v65
    v_lshl_or_b32 v65, v65, 16, v65
    v_cvt_f32_u32 v64, v64
    v_mul_f32 v64, 0x3d000000, v64
    v_lshlrev_b32 v66, 2, v9
    v_cvt_f32_u32 v66, v66
    v_and_b32 v67, 1, v8
    v_cmp_eq_u32 s[48:49], 1, v67''')
    for jj in range(4):
        g(f'v_add_f32 v67, {float(jj)}, v66\nv_mul_f32 v67, v67, v64')
        g.sincos(68, 69, 67, fl(1 / math.sqrt(32)))
        g(f'''v_cvt_pk_f16_f32 v78, v68, -v69
        v_cvt_pk_f16_f32 v79, v69, v68
        v_cndmask_b32 v{70+jj}, v78, v79, s[48:49]
        v_xor_b32 v{74+jj}, v65, v{70+jj}''')
    g('v_cvt_f32_u32 v64, v2')
    for k in range(1, 10):
        g(f'v_mul_f32 v65, {fl(k/576)}, v64')
        g.sincos(78 + 2 * k, 79 + 2 * k, 65)
    g.stamp()
    g('s_waitcnt vmcnt(39)')
    g.stamp()
    for i in range(3):
        for r in range(4):
            g(f'v_xor_b32 v{Y+4*i+r}, v{61+i}, v{Y+4*i+r}\nds_write_b32 v{58+i}, v{Y+4*i+r} offset:{144*r}')
    g('''v_mul_u32_u24 v58, 144, v8
    v_lshl_add_u32 v58, v9, 4, v58
    v_and_b32 v59, 7, v8
    v_lshlrev_b32 v59, 5, v59
    v_lshl_add_u32 v59, v9, 1, v59
    v_add_u32 v59, s12, v59
    v_mul_u32_u24 v59, 80, v59
    v_lshrrev_b32 v60, 3, v8
    v_lshl_add_u32 v59, v60, 3, v59
    v_add_u32 v59, 11520, v59
    v_mul_u32_u24 v60, 80, v0
    v_add_u32 v60, 11520, v60
    s_waitcnt lgkmcnt(0)
    s_barrier''')
    g.stamp()
    BB = 126
    for nt in range(5):
        for t in range(2): g(f'ds_read_b128 v[{BB+8*nt+4*t}:{BB+8*nt+4*t+3}], v58 offset:{2304*nt+64*t}')
    g('s_waitcnt vmcnt(36)')
    g.wscale_reduce(112, 50, 51)
    C = 2 * 0 + 166
    for nt in range(5):
        g(f'v_mfma_f32_16x16x32_f16 v[{C+4*nt}:{C+4*nt+3}], v[70:73], v[{BB+8*nt}:{BB+8*nt+3}], 0')
        g(f'v_mfma_f32_16x16x32_f16 v[{C+4*nt}:{C+4*nt+3}], v[74:77], v[{BB+8*nt+4}:{BB+8*nt+7}], v[{C+4*nt}:{C+4*nt+3}]')
    g(f's_lshl_b32 s50, s50, 23\nv_mov_b32 v64, s50\nv_mul_f32 v64, {fl(1/math.sqrt(18))}, v64\nv_add_f32 v65, v64, v64')
    for k in range(1, 10):
        sc = 64 if k == 9 else 65
        g(f'v_mul_f32 v{78+2*k}, v{sc}, v{78+2*k}\nv_mul_f32 v{79+2*k}, v{sc}, v{79+2*k}')
    for nt in range(5):
        g(f'ds_write_b64 v59, v[{C+4*nt}:{C+4*nt+1}] offset:{16*nt}\nds_write_b64 v59, v[{C+4*nt+2}:{C+4*nt+3}] offset:{16*nt+80}')
    g('s_waitcnt lgkmcnt(0)\ns_barrier')
    V = 126
    g.stamp()
    for i in range(5): g(f'ds_read_b128 v[{V+4*i}:{V+4*i+3}], v60 offset:{16*i}')
    g('s_waitcnt vmcnt(0)')
    for d2 in range(18): g(f'v_lshlrev_b32 v{X+d2}, 16, v{X+d2}\nv_lshlrev_b32 v{WR+d2}, 16, v{WR+d2}')
    g('s_waitcnt lgkmcnt(0)')
    g(f'v_mul_f32 v{V}, v64, v{V}')
    for k in range(1, 10):
        c, s_, vr, vi = 78 + 2 * k, 79 + 2 * k, V + 2 * k, V + 2 * k + 1
        if k < 9: g(f'v_mul_f32 v66, v{vr}, v{s_}')
        g(f'v_mul_f32 v{vr}, v{vr}, v{c}\nv_fma_f32 v{vr}, -v{vi}, v{s_}, v{vr}')
        if k < 9: g(f'v_fma_f32 v{vi}, v{vi}, v{c}, v66')
    PE, PO, QE, QO = 146, 151, 156, 160
    for j in range(5):
        g(f'v_fmamk_f32 v{PE+j}, v{V+4}, {fl(C18(2*j))}, v{V}')
        for k in (4, 6, 8): g(f'v_fmac_f32 v{PE+j}, {fl(C18(k*j))}, v{V+2*k}')
        g(f'v_mul_f32 v{PO+j}, {fl((-1.0)**j)}, v{V+18}')
        for k in (1, 3, 5, 7): g(f'v_fmac_f32 v{PO+j}, {fl(C18(k*j))}, v{V+2*k}')
    for j in range(1, 5):
        g(f'v_mul_f32 v{QE+j-1}, {fl(S18(2*j))}, v{V+5}')
        for k in (4, 6, 8): g(f'v_fmac_f32 v{QE+j-1}, {fl(S18(k*j))}, v{V+2*k+1}')
        g(f'v_mul_f32 v{QO+j-1}, {fl(S18(j))}, v{V+3}')
        for k in (3, 5, 7): g(f'v_fmac_f32 v{QO+j-1}, {fl(S18(k*j))}, v{V+2*k+1}')
    Yv = 166
    g(f'v_add_f32 v{Yv}, v{PE}, v{PO}\nv_sub_f32 v{Yv+9}, v{PE}, v{PO}')
    for j in range(1, 5):
        g(f'''v_add_f32 v66, v{PE+j}, v{PO+j}
        v_sub_f32 v67, v{PE+j}, v{PO+j}
        v_add_f32 v68, v{QO+j-1}, v{QE+j-1}
        v_sub_f32 v69, v{QO+j-1}, v{QE+j-1}
        v_sub_f32 v{Yv+j}, v66, v68
        v_add_f32 v{Yv+18-j}, v66, v68
        v_sub_f32 v{Yv+9-j}, v67, v69
        v_add_f32 v{Yv+9+j}, v67, v69''')
    g('v_mul_u32_u24 v4, 1152, v1\nv_lshl_add_u32 v4, v2, 1, v4')
    for i in range(0, 18, 2):
        g.rbf(Yv + i, Yv + i + 1)
        g(f'v_add_f32 v{X+i}, v{X+i}, v{Yv+i}\nv_add_f32 v{X+i+1}, v{X+i+1}, v{Yv+i+1}')
        g.rbf(X + i, X + i + 1)
        g(f'ds_write_b16_d16_hi v4, v{X+i} offset:{64*i}\nds_write_b16_d16_hi v4, v{X+i+1} offset:{64*i+64}')
    g.stamp()
    g.ln_stats(X, 18, 70, 71, 72, 73)
    g.ln_apply(X, Yv, 18, 70, 71)
    g(f'v_mul_f32 v74, v{Yv}, v{WR}')
    for i in range(1, 18): g(f'v_fmac_f32 v74, v{Yv+i}, v{WR+i}')
    for i in range(0, 18, 2):
        g(f'''v_add_f32 v{Yv+i}, v{Yv+i}, v{X+i}
        v_add_f32 v{Yv+i+1}, v{Yv+i+1}, v{X+i+1}
        v_cvt_pk_bf16_f32 v{Yv+i}, v{Yv+i}, v{Yv+i+1}
        ds_write_b16 v4, v{Yv+i} offset:{32000+64*i}
        ds_write_b16_d16_hi v4, v{Yv+i} offset:{32000+64*i+64}''')
    g.red32(74, 72)
    g('''v_cvt_pk_bf16_f32 v74, v74, v74
    v_and_b32 v74, 0xffff0000, v74
    v_ashrrev_i32 v75, 31, v74
    v_or_b32 v75, 0x80000000, v75
    v_xor_b32 v74, v74, v75
    v_and_b32 v74, 0xffff0000, v74
    s_lshl_b32 s12, s3, 3
    v_add_u32 v75, s12, v1
    v_sub_u32 v76, 0xffff, v75
    v_or_b32 v74, v74, v76
    v_lshlrev_b32 v76, 2, v1
    v_lshlrev_b32 v77, 3, v75
    v_lshlrev_b32 v4, 4, v0
    v_mov_b32 v5, 0x7fff0000
    v_cmp_lt_u32 vcc, 63, v0
    s_mul_i32 s12, s3, 9216
    s_add_u32 s13, s12, 0x1000
    v_add_u32 v6, 0x1000, v4
    v_cndmask_b32 v5, v6, v5, vcc
    v_cmp_eq_u32 vcc, 0, v2
    s_and_saveexec_b64 s[14:15], vcc
    ds_write_b32 v76, v74 offset:41216
    buffer_store_dwordx2 v[70:71], v77, s[44:47], 0 offen sc1
    s_mov_b64 exec, s[14:15]
    s_waitcnt lgkmcnt(0)
    s_barrier''')
    for i in range(3):
        g(f'ds_read_b128 v[{10+8*i}:{13+8*i}], v4 offset:{4096*i}\nds_read_b128 v[{14+8*i}:{17+8*i}], v4 offset:{32000+4096*i}')
    for i in range(3):
        va, so = (4, 12) if i == 0 else ((4, 13) if i == 1 else (5, 13))
        g(f'''s_waitcnt lgkmcnt({5-2*i})
        buffer_store_dwordx4 v[{10+8*i}:{13+8*i}], v{va}, s[36:39], s{so} offen sc1
        s_waitcnt lgkmcnt({4-2*i})
        buffer_store_dwordx4 v[{14+8*i}:{17+8*i}], v{va}, s[24:27], s{so} offen sc1''')
    g('''v_mov_b32 v4, 0
    ds_read_b128 v[40:43], v4 offset:41216
    ds_read_b128 v[44:47], v4 offset:41232
    s_lshl_b32 s12, s3, 5
    s_waitcnt vmcnt(0) lgkmcnt(0)
    s_barrier
    v_cmp_eq_u32 vcc, 0, v0
    s_and_saveexec_b64 s[14:15], vcc
    s_cbranch_execz K3_DONE
    buffer_store_dwordx4 v[40:43], v4, s[40:43], s12 offen sc1
    buffer_store_dwordx4 v[44:47], v4, s[40:43], s12 offen offset:16 sc1''')
    g.lab('K3_DONE')
    g.stamp_out(2, 10)
    g('s_endpgm')
    g.ns = 0
    g.lab('MOE')
    moe(g)
    return g.text(), 232
```

```python
from gen_common import *
NW4 = 144
def moe(g):
    g(f'''s_sub_u32 s61, s2, 256
    s_cmp_ge_u32 s61, {NW4}
    s_cbranch_scc1 K4_END
    s_load_dwordx4 s[4:7], s[0:1], 40
    s_load_dwordx4 s[8:11], s[0:1], 56
    s_load_dwordx4 s[12:15], s[0:1], 72
    v_and_b32 v1, 7, v0
    v_lshrrev_b32 v2, 3, v0
    v_mul_u32_u24 v3, 9216, v2
    v_lshl_add_u32 v3, v1, 3, v3
    s_lshl_b32 s3, s61, 6
    v_add_u32 v3, s3, v3
    v_and_b32 v7, 63, v0
    v_lshrrev_b32 v6, 6, v0
    v_and_b32 v8, 15, v0
    v_readfirstlane_b32 s62, v6
    v_lshrrev_b32 v9, 4, v7
    v_lshlrev_b32 v4, 4, v0
    s_mul_i32 s63, s61, 36864
    s_waitcnt lgkmcnt(0)''')
    g.srd(16, 4, 576 * 9216); g.srd(20, 6, 576 * 9216); g.srd(24, 8, 4608 * 1152); g.srd(28, 10, 2048 * 1152)
    g.srd(36, 14, 8192, KEY_OFF); g.srd(40, 14, 2048 * 1152, H_OFF)
    g.srd(44, 14, NREP * 4608, ACC_OFF); g.srd(48, 14, 2048 * 8, STAT_OFF)
    g.stamp()
    WG, WU, WD, BG, BD = 10, 46, 82, 120, 192
    for i in range(18):
        g(f's_mov_b32 s3, {i*294912}\nbuffer_load_dwordx2 v[{WG+2*i}:{WG+2*i+1}], v3, s[16:19], s3 offen\nbuffer_load_dwordx2 v[{WU+2*i}:{WU+2*i+1}], v3, s[20:23], s3 offen')
    for i in range(9):
        g(f's_add_u32 s3, s63, {i*4096}\nbuffer_load_dwordx4 v[{WD+4*i}:{WD+4*i+3}], v4, s[24:27], s3 offen')
    g.srd(32, 12, 256)
    g('''v_mul_u32_u24 v3, 136, v2
    v_lshl_add_u32 v3, v1, 3, v3
    v_mul_u32_u24 v5, 1088, v9
    v_lshrrev_b32 v6, 3, v8
    v_lshl_add_u32 v5, v6, 6, v5
    v_lshl_add_u32 v5, v1, 1, v5
    s_lshl_b32 s3, s62, 4
    v_add_u32 v5, s3, v5''')
    for rho in range(3):
        g(f's_waitcnt vmcnt({45-12*(rho+1)})')
        for i in range(6):
            ii = 6 * rho + i
            g(f'ds_write_b64 v3, v[{WG+2*ii}:{WG+2*ii+1}] offset:{4352*i}\nds_write_b64 v3, v[{WU+2*ii}:{WU+2*ii+1}] offset:{4352*i+64}')
        g('s_waitcnt lgkmcnt(0)\ns_barrier')
        for t in range(6):
            for jj in range(8):
                r = BG + 4 * (6 * rho + t) + jj // 2
                q = 4 * t + jj // 2
                tm = WG + 12 * rho + q if q < 12 else WU + 12 * rho + q - 12
                g(f'ds_read_u16 v{tm if jj & 1 else r}, v5 offset:{4352*t+136*jj}')
        g('s_waitcnt lgkmcnt(0)\ns_barrier')
        for q in range(24):
            r = BG + 24 * rho + q
            tm = WG + 12 * rho + q if q < 12 else WU + 12 * rho + q - 12
            g(f'v_lshl_or_b32 v{r}, v{tm}, 16, v{r}')
    g('s_waitcnt vmcnt(0)')
    for i in range(9):
        g(f'''v_add_u32 v3, {256*i}, v0
        v_mul_u32_u24 v5, 14564, v3
        v_lshrrev_b32 v5, 20, v5
        v_lshlrev_b32 v3, 4, v3
        v_lshl_add_u32 v3, v5, 4, v3
        ds_write_b128 v3, v[{WD+4*i}:{WD+4*i+3}]''')
    g('''v_mul_u32_u24 v5, 9344, v9
    v_lshl_add_u32 v5, v8, 1, v5
    s_mul_i32 s3, s62, 288
    v_add_u32 v5, s3, v5
    s_waitcnt lgkmcnt(0)
    s_barrier''')
    for nt in range(9):
        for jj in range(8):
            g(f'ds_read_u16 v{(WD if jj & 1 else BD)+4*nt+jj//2}, v5 offset:{32*nt+1168*jj}')
    g('s_waitcnt lgkmcnt(0)\ns_barrier')
    for q in range(36): g(f'v_lshl_or_b32 v{BD+q}, v{WD+q}, 16, v{BD+q}')
    g.stamp()
    KY = 10
    g('''s_cmp_lg_u32 s62, 0
    s_cbranch_scc1 MOE_WAIT
    v_lshlrev_b32 v3, 4, v7
    s_movk_i32 s3, 0x1000''')
    g.lab('MOE_POLL')
    for i in range(8): g(f'buffer_load_dwordx4 v[{KY+4*i}:{KY+4*i+3}], v3, s[36:39], {"s3" if i>=4 else "0"} offen offset:{1024*(i%4)} sc1')
    g(f's_waitcnt vmcnt(0)\nv_min3_u32 v42, v{KY}, v{KY+1}, v{KY+2}')
    for i in range(3, 31, 2): g(f'v_min3_u32 v42, v42, v{KY+i}, v{KY+i+1}')
    g(f'''v_min_u32 v42, v42, v{KY+31}
    v_cmp_eq_u32 vcc, 0, v42
    s_cbranch_vccz MOE_GO
    s_sleep 8
    s_branch MOE_POLL''')
    g.lab('MOE_GO')
    g(f'v_max_u32 v44, v{KY}, v{KY+1}\nv_min_u32 v45, v{KY}, v{KY+1}')
    for i in range(2, 32): g(f'v_med3_u32 v45, v44, v45, v{KY+i}\nv_max_u32 v44, v44, v{KY+i}')
    g('v_mov_b32 v46, v44')
    g.red64_to_s(46, 47, 52, 54)
    g('v_cmp_eq_u32 vcc, s52, v44\ns_nop 1\nv_cndmask_b32 v46, v44, v45, vcc')
    g.red64_to_s(46, 47, 53, 54)
    g('v_mov_b32 v46, s52\nv_mov_b32 v47, s53\nv_mov_b32 v48, 0\nds_write_b64 v48, v[46:47] offset:4096\ns_waitcnt lgkmcnt(0)')
    g.lab('MOE_WAIT')
    g('''s_barrier
    v_mov_b32 v48, 0
    ds_read_b64 v[46:47], v48 offset:4096
    v_lshlrev_b32 v49, 1, v0
    s_waitcnt lgkmcnt(0)
    v_readfirstlane_b32 s52, v46
    v_readfirstlane_b32 s53, v47
    s_nop 3
    s_and_b32 s54, s52, 0xffff
    s_sub_u32 s54, 0xffff, s54
    s_and_b32 s55, s53, 0xffff
    s_sub_u32 s55, 0xffff, s55
    s_lshl_b32 s56, s54, 3
    s_lshl_b32 s57, s55, 3
    s_mul_i32 s54, s54, 1152
    s_mul_i32 s55, s55, 1152
    buffer_load_dwordx2 v[50:51], v48, s[48:51], s56 offen sc1
    buffer_load_dwordx2 v[52:53], v48, s[48:51], s57 offen sc1''')
    H = 54
    for j in range(3):
        g(f'buffer_load_ushort v{H+2*j}, v49, s[40:43], s54 offen offset:{512*j} sc1\nbuffer_load_ushort v{H+2*j+1}, v49, s[40:43], s55 offen offset:{512*j} sc1')
    g.stamp()
    g('''v_and_b32 v3, 1, v8
    v_mul_u32_u24 v5, 1536, v3
    v_lshl_add_u32 v5, v9, 4, v5
    v_lshlrev_b32 v3, 6, v3
    v_lshl_add_u32 v3, v9, 4, v3
    s_waitcnt vmcnt(0)''')
    for j in range(3):
        a, b = H + 2 * j, H + 2 * j + 1
        c, d = a + 6, b + 6
        g(f'v_lshlrev_b32 v{a}, 16, v{a}\nv_lshlrev_b32 v{b}, 16, v{b}\nv_sub_f32 v{c}, v{a}, v50\nv_sub_f32 v{d}, v{b}, v52')
        g.rbf(c, d)
        g(f'v_mul_f32 v{c}, v{c}, v51\nv_mul_f32 v{d}, v{d}, v53')
        g.rbf(c, d)
        g(f'ds_write_b16_d16_hi v49, v{c} offset:{512*j}\nds_write_b16_d16_hi v49, v{d} offset:{1536+512*j}')
    g('s_waitcnt lgkmcnt(0)\ns_barrier')
    AA = 66
    for half in range(2):
        for t in range(9): g(f'ds_read_b128 v[{AA+4*t}:{AA+4*t+3}], v5 offset:{64*(9*half+t)}')
        for t in range(9):
            T = 9 * half + t
            g(f's_waitcnt lgkmcnt({8-t})\nv_mfma_f32_16x16x32_bf16 v[104:107], v[{AA+4*t}:{AA+4*t+3}], v[{BG+4*T}:{BG+4*T+3}], ' + ('0' if T == 0 else 'v[104:107]'))
        g('s_nop 1')
    g('''s_lshl_b32 s3, s62, 4
    v_lshl_add_u32 v6, v7, 1, s3
    v_mov_b32 v110, 0x200
    v_cmp_lt_u32 vcc, 7, v7
    s_nop 4
    v_cndmask_b32 v6, v6, v110, vcc''')
    g.rbf(104, 105)
    g(f'''s_nop 1
    v_mov_b32_dpp v106, v104 row_shl:8 row_mask:0xf bank_mask:0xf
    v_mov_b32_dpp v107, v105 row_shl:8 row_mask:0xf bank_mask:0xf
    v_mul_f32 v108, {fl(-1/math.log(2))}, v104
    v_mul_f32 v109, {fl(-1/math.log(2))}, v105
    v_exp_f32 v108, v108
    v_exp_f32 v109, v109
    s_nop 0
    v_add_f32 v108, 1.0, v108
    v_add_f32 v109, 1.0, v109
    v_rcp_f32 v108, v108
    v_rcp_f32 v109, v109
    s_nop 0
    v_mul_f32 v108, v108, v104
    v_mul_f32 v109, v109, v105''')
    g.rbf(108, 109)
    g('''v_mul_f32 v108, v108, v106
    v_mul_f32 v109, v109, v107
    v_cvt_pk_bf16_f32 v108, v108, v109
    ds_write_b16 v6, v108 offset:4096
    ds_write_b16_d16_hi v6, v108 offset:4160
    s_waitcnt lgkmcnt(0)
    s_barrier
    ds_read_b128 v[66:69], v3 offset:4096''')
    g(f'''s_and_b32 s3, s61, {NREP-1}
    s_mul_i32 s3, s3, 4608
    s_mul_i32 s56, s62, 576
    s_add_u32 s3, s3, s56
    v_lshlrev_b32 v6, 2, v7
    s_waitcnt lgkmcnt(0)''')
    for nt in range(9): g(f'v_mfma_f32_16x16x32_bf16 v[{70+4*nt}:{73+4*nt}], v[66:69], v[{BD+4*nt}:{BD+4*nt+3}], 0')
    g('s_mov_b64 exec, 0xffff\ns_nop 4')
    for nt in range(9):
        g(f'buffer_atomic_add_f32 v{70+4*nt}, v6, s[44:47], s3 offen offset:{64*nt} sc1\nbuffer_atomic_add_f32 v{71+4*nt}, v6, s[44:47], s3 offen offset:{2304+64*nt} sc1')
    g.stamp()
    g(f'''s_mov_b64 exec, -1
    s_waitcnt vmcnt(0)
    s_barrier
    v_mov_b32 v106, 1
    v_cmp_eq_u32 vcc, 0, v0
    s_and_saveexec_b64 s[58:59], vcc
    s_cbranch_execz K4_SKIP
    buffer_atomic_add v106, v48, s[32:35], 0 offen sc0 sc1
    s_waitcnt vmcnt(0)
    ds_write_b32 v48, v106 offset:8192''')
    g.lab('K4_SKIP')
    g(f'''s_mov_b64 exec, s[58:59]
    s_waitcnt lgkmcnt(0)
    s_barrier
    ds_read_b32 v106, v48 offset:8192
    s_waitcnt lgkmcnt(0)
    v_readfirstlane_b32 s3, v106''')
    g.stamp()
    g(f'''s_cmp_lg_u32 s3, {NW4-1}
    s_cbranch_scc1 K4_FIN
    v_lshlrev_b32 v110, 2, v0
    v_mov_b32 v106, 0x7fff0000
    v_cmp_lt_u32 vcc, 63, v0
    s_nop 1
    v_cndmask_b32 v111, v110, v106, vcc
    v_cndmask_b32 v112, v49, v106, vcc''')
    R = 120
    for rep in range(NREP):
        g(f's_mov_b32 s3, {rep*4608}\ns_mov_b32 s56, {rep*4608+2304}')
        for j in range(3):
            for tok in range(2):
                g(f'buffer_load_dword v{R+6*rep+2*j+tok}, v{110 if j<2 else 111}, s[44:47], s{3 if tok==0 else 56} offen offset:{1024*j} sc0 sc1')
    for tok, sk in ((0, 52), (1, 53)):
        g(f'''s_and_b32 s3, s{sk}, 0xffff0000
        s_ashr_i32 s56, s3, 31
        s_not_b32 s56, s56
        s_or_b32 s56, s56, 0x80000000
        s_xor_b32 s3, s3, s56
        s_and_b32 s3, s3, 0xffff0000
        v_mov_b32 v{114+tok}, s3
        v_mul_f32 v{114+tok}, {fl(-1/math.log(2))}, v{114+tok}
        v_exp_f32 v{114+tok}, v{114+tok}
        s_nop 0
        v_add_f32 v{114+tok}, 1.0, v{114+tok}
        v_rcp_f32 v{114+tok}, v{114+tok}
        s_nop 0''')
        g.rbf(114 + tok)
    g('s_waitcnt vmcnt(0)')
    for j in range(3):
        for tok in range(2):
            a = R + 2 * j + tok
            for rep in range(1, NREP): g(f'v_add_f32 v{a}, v{a}, v{R+6*rep+2*j+tok}')
            g.rbf(a)
            g(f'v_mul_f32 v{a}, v{a}, v{114+tok}')
            g.rbf(a)
            g(f'v_add_f32 v{a}, v{a}, v{H+6+2*j+tok}')
            g.rbf(a)
            g(f'v_add_f32 v{a}, v{a}, v{H+2*j+tok}\nv_cvt_pk_bf16_f32 v{a}, v{a}, v{a}')
            g(f'buffer_store_short v{a}, v{49 if j<2 else 112}, s[28:31], s{54+tok} offen offset:{512*j} sc1')
    g.lab('K4_FIN')
    g.stamp_out(2, 14)
    g.lab('K4_END')
    g('s_endpgm')
```

```python
import math, struct, os
STAMP = int(os.environ.get('STAMP', '0'))
def f2u(x): return struct.unpack('<I', struct.pack('<f', x))[0]
def fl(x): return '0x%08x' % f2u(x)
XT_OFF, WT_OFF, YT_OFF, H_OFF = 0x0, 0x250000, 0x4A0000, 0x6F0000
KEY_OFF, WMAX_OFF, ACC_OFF, STAT_OFF = 0x94E000, 0x942000, 0x944000, 0x950000
P_OFF = 0xB00000
COLB = 289 * 8192
NREP = 8
class G:
    def __init__(s): s.L = []; s.ns = 0
    def __call__(s, t):
        for l in t.strip('\n').split('\n'): s.L.append('    ' + l.strip())
    def stamp(s):
        if not STAMP: return
        n = s.ns; s.ns += 1
        s(f's_memrealtime s[{64+2*n}:{65+2*n}]')
    def stamp_out(s, kidx, wsp):
        if not STAMP: return
        s.stamp()
        s('s_waitcnt lgkmcnt(0)\ns_mov_b64 exec, -1')
        for n in range(s.ns): s(f'v_writelane_b32 v250, s{64+2*n}, {n}')
        s.srd(64, wsp, 4 * 512 * 64, 0xA00000)
        s(f's_lshl_b32 s68, s2, 6\ns_add_u32 s68, s68, {kidx*512*64}\nv_lshlrev_b32 v251, 2, v0\nv_cmp_gt_u32 vcc, 16, v0\ns_and_saveexec_b64 s[70:71], vcc\ns_cbranch_execz SO{kidx}_{s.ns}_{len(s.L)}\nbuffer_store_dword v250, v251, s[64:67], s68 offen')
        s.lab(f'SO{kidx}_{s.ns}_{len(s.L)-7}')
    def lab(s, n): s.L.append(n + ':')
    def text(s): return '\n'.join(s.L) + '\n'
    def srd(s, d, p, size, off=0):
        if off:
            s(f's_add_u32 s{d}, s{p}, {hex(off)}\ns_addc_u32 s{d+1}, s{p+1}, 0')
        else:
            s(f's_mov_b32 s{d}, s{p}\ns_mov_b32 s{d+1}, s{p+1}')
        s(f's_mov_b32 s{d+2}, {hex(size)}\ns_mov_b32 s{d+3}, 0x20000')
    def red32(s, v, t, op='v_add_f32'):
        for p in ['quad_perm:[1,0,3,2]', 'quad_perm:[2,3,0,1]', 'row_half_mirror', 'row_mirror']:
            s(f's_nop 1\n{op}_dpp v{v}, v{v}, v{v} {p} row_mask:0xf bank_mask:0xf')
        s(f'ds_swizzle_b32 v{t}, v{v} offset:0x401F\ns_waitcnt lgkmcnt(0)\n{op} v{v}, v{v}, v{t}')
    def red64_to_s(s, v, t, sd, st, op='v_max_u32', sop='s_max_u32'):
        s.red32(v, t, op)
        s(f's_nop 1\nv_readlane_b32 s{sd}, v{v}, 0\nv_readlane_b32 s{st}, v{v}, 32\ns_nop 3\n{sop} s{sd}, s{sd}, s{st}')
    def rbf(s, a, b=None):
        if b is None:
            s(f'v_cvt_pk_bf16_f32 v{a}, v{a}, v{a}\nv_lshlrev_b32 v{a}, 16, v{a}')
        else:
            s(f'v_cvt_pk_bf16_f32 v{b}, v{a}, v{b}\nv_lshlrev_b32 v{a}, 16, v{b}\nv_and_b32 v{b}, 0xffff0000, v{b}')
    def sincos(s, c, sn, ang, scale=None):
        s(f'v_cos_f32 v{c}, v{ang}\nv_sin_f32 v{sn}, v{ang}')
        if scale is not None:
            s(f's_nop 0\nv_mul_f32 v{c}, {scale}, v{c}\nv_mul_f32 v{sn}, {scale}, v{sn}')
    def ln_stats(s, x, n, vm, vr, t, t2):
        s(f'v_add_f32 v{vm}, v{x}, v{x+1}')
        for i in range(2, n): s(f'v_add_f32 v{vm}, v{vm}, v{x+i}')
        s.red32(vm, t)
        s(f'v_mul_f32 v{vm}, {fl(1/576)}, v{vm}')
        s(f'v_sub_f32 v{t2}, v{x}, v{vm}\nv_mul_f32 v{vr}, v{t2}, v{t2}')
        for i in range(1, n): s(f'v_sub_f32 v{t2}, v{x+i}, v{vm}\nv_fmac_f32 v{vr}, v{t2}, v{t2}')
        s.red32(vr, t)
        s(f'v_mul_f32 v{vr}, {fl(1/576)}, v{vr}')
        s.rbf(vm, vr)
        s(f'v_add_f32 v{vr}, {fl(1e-5)}, v{vr}')
        s.rbf(vr)
        s(f'v_sqrt_f32 v{vr}, v{vr}\ns_nop 0')
        s.rbf(vr)
        s(f'v_rcp_f32 v{vr}, v{vr}\ns_nop 0')
    def ln_apply(s, x, o, n, vm, vr):
        for i in range(0, n, 2):
            a, b = o + i, o + i + 1
            s(f'v_sub_f32 v{a}, v{x+i}, v{vm}\nv_sub_f32 v{b}, v{x+i+1}, v{vm}')
            s.rbf(a, b)
            s(f'v_mul_f32 v{a}, v{a}, v{vr}\nv_mul_f32 v{b}, v{b}, v{vr}')
            s.rbf(a, b)
    def wscale_load(s, v, lane, srd):
        s(f'v_mul_u32_u24 v{v+12}, 48, v{lane}')
        for i in range(3): s(f'buffer_load_dwordx4 v[{v+4*i}:{v+4*i+3}], v{v+12}, s[{srd}:{srd+3}], 0 offen offset:{16*i}')
    def wscale_reduce(s, v, sE, st):
        s(f'v_max3_u32 v{v}, v{v}, v{v+1}, v{v+2}')
        for i in range(3, 11, 2): s(f'v_max3_u32 v{v}, v{v}, v{v+i}, v{v+i+1}')
        s(f'v_max_u32 v{v}, v{v}, v{v+11}')
        s.red64_to_s(v, v + 1, sE, st)
        s(f's_lshr_b32 s{sE}, s{sE}, 7\ns_max_u32 s{sE}, s{sE}, 1\ns_min_u32 s{sE}, s{sE}, 253')
PF1 = os.environ.get('PF1', 'g'); PF2 = os.environ.get('PF2', 'ud')
def slicemap(g, d, j, t):
    g(f'''s_and_b32 s{d}, s{j}, 0xf0
    s_and_b32 s{t}, s{j}, 7
    s_lshl_b32 s{t}, s{t}, 1
    s_or_b32 s{d}, s{d}, s{t}
    s_bfe_u32 s{t}, s{j}, 0x10003
    s_or_b32 s{d}, s{d}, s{t}''')
def pref(g, base, which, end):
    g(f'''s_sub_u32 s3, s2, {base}
    s_cmp_ge_u32 s3, 144
    s_cbranch_scc1 {end}
    s_load_dwordx4 s[4:7], s[0:1], 40
    s_load_dwordx2 s[8:9], s[0:1], 56''')
    slicemap(g, 12, 3, 13)
    g(f'''v_and_b32 v1, 7, v0
    v_lshrrev_b32 v2, 3, v0
    v_mul_u32_u24 v3, 9216, v2
    v_lshl_add_u32 v3, v1, 4, v3
    s_lshr_b32 s13, s12, 1
    s_lshl_b32 s13, s13, 7
    s_and_b32 s14, s12, 1
    s_mul_i32 s14, s14, {9*294912}
    s_add_u32 s13, s13, s14
    v_add_u32 v3, s13, v3
    v_lshlrev_b32 v4, 4, v0
    s_mul_i32 s12, s12, 36864
    s_waitcnt lgkmcnt(0)''')
    g.srd(16, 4, 576 * 9216); g.srd(20, 6, 576 * 9216); g.srd(24, 8, 4608 * 1152)
    for i in range(9):
        g(f's_mov_b32 s3, {i*294912}')
        if 'g' in which: g(f'buffer_load_dwordx4 v[{8+4*i}:{11+4*i}], v3, s[16:19], s3 offen')
        if 'u' in which: g(f'buffer_load_dwordx4 v[{44+4*i}:{47+4*i}], v3, s[20:23], s3 offen')
    if 'd' in which:
        for i in range(9): g(f's_add_u32 s3, s12, {i*4096}\nbuffer_load_dwordx4 v[{80+(4*i)%24}:{83+(4*i)%24}], v4, s[24:27], s3 offen')
    g('s_waitcnt vmcnt(0)\ns_endpgm')
def header(name): return f'.globl {name}\n.p2align 8\n.type {name},@function\n{name}:\n'
def desc(name, vg, sg=64):
    if STAMP: vg, sg = 256, 100
    vg4 = (vg + 3) // 4 * 4
    return f'''.p2align 6
.amdhsa_kernel {name}
  .amdhsa_next_free_vgpr {vg4}
  .amdhsa_next_free_sgpr {sg}
  .amdhsa_accum_offset {vg4}
  .amdhsa_group_segment_fixed_size 0
  .amdhsa_kernarg_size 88
  .amdhsa_user_sgpr_count 2
  .amdhsa_user_sgpr_kernarg_segment_ptr 1
  .amdhsa_system_sgpr_workgroup_id_x 1
.end_amdhsa_kernel
'''
C18 = lambda m: math.cos(2 * math.pi * m / 18)
S18 = lambda m: math.sin(2 * math.pi * m / 18)
```

```python
from gen_common import *
def k1():
    g = G()
    g('''s_cmp_ge_u32 s2, 401
    s_cbranch_scc1 K1_PF
    s_load_dwordx4 s[4:7], s[0:1], 0
    s_load_dwordx2 s[8:9], s[0:1], 16
    s_load_dwordx2 s[10:11], s[0:1], 80
    s_cmp_ge_u32 s2, 256
    s_cbranch_scc1 K1_TR
    s_and_b32 s3, s2, 7
    s_lshl_b32 s3, s3, 5
    s_lshr_b32 s12, s2, 3
    s_add_u32 s3, s3, s12''')
    g('''v_lshrrev_b32 v1, 5, v0
    v_and_b32 v2, 31, v0
    s_and_b32 s12, s3, 7
    s_lshl_b32 s12, s12, 3
    v_add_u32 v3, s12, v1
    v_lshlrev_b32 v3, 5, v3
    s_lshr_b32 s12, s3, 3
    v_add_u32 v3, s12, v3
    v_mul_u32_u24 v3, 1152, v3
    v_lshl_add_u32 v3, v2, 1, v3
    s_waitcnt lgkmcnt(0)''')
    g.srd(16, 4, 2048 * 1152)
    g.srd(20, 10, COLB, XT_OFF)
    X = 10
    g.stamp()
    for d2 in range(18): g(f'buffer_load_ushort v{X+d2}, v3, s[16:19], 0 offen offset:{64*d2}')
    g('v_cvt_f32_u32 v4, v2')
    for k in range(1, 10):
        g(f'v_mul_f32 v5, {fl(k/576)}, v4')
        g.sincos(28 + 2 * k, 29 + 2 * k, 5, fl(1 / math.sqrt(18)))
    g('''v_lshrrev_b32 v6, 6, v0
    v_and_b32 v7, 63, v0
    s_nop 0
    v_readfirstlane_b32 s13, v6
    v_and_b32 v8, 15, v7
    v_lshrrev_b32 v9, 4, v7
    s_and_b32 s14, s13, 1
    s_lshl_b32 s15, s14, 4
    v_add_u32 v64, s15, v8
    v_cvt_f32_u32 v65, v64
    v_mul_f32 v65, 0x3d000000, v65
    v_lshlrev_b32 v66, 2, v9
    v_cvt_f32_u32 v66, v66
    s_mul_i32 s15, s14, 0x80008000
    v_and_b32 v67, 1, v8
    v_mul_u32_u24 v67, 0x8000, v67
    v_lshl_or_b32 v67, v67, 16, v67''')
    for jj in range(4):
        g(f'v_add_f32 v5, {float(jj)}, v66\nv_mul_f32 v5, v5, v65')
        g.sincos(68, 69, 5, fl(1 / math.sqrt(32)))
        g(f'''v_cvt_pk_f16_f32 v{48+jj}, v68, v69
        v_cvt_pk_f16_f32 v{56+jj}, -v69, v68
        v_xor_b32 v{56+jj}, s15, v{56+jj}
        v_xor_b32 v{52+jj}, v67, v{48+jj}
        v_xor_b32 v{60+jj}, v67, v{56+jj}''')
    g.stamp()
    g('s_waitcnt vmcnt(0)')
    g.stamp()
    for d2 in range(18): g(f'v_lshlrev_b32 v{X+d2}, 16, v{X+d2}')
    g.ln_stats(X, 18, 70, 71, 72, 73)
    g.ln_apply(X, X, 18, 70, 71)
    A, B = 74, 82
    for j in range(1, 9):
        g(f'v_add_f32 v{A+j-1}, v{X+j}, v{X+18-j}\nv_sub_f32 v{B+j-1}, v{X+j}, v{X+18-j}')
    AP, AM, BP, BM = 90, 94, 98, 102
    for j in range(1, 5):
        g(f'''v_add_f32 v{AP+j-1}, v{A+j-1}, v{A+9-j-1}
        v_sub_f32 v{AM+j-1}, v{A+j-1}, v{A+9-j-1}
        v_add_f32 v{BP+j-1}, v{B+j-1}, v{B+9-j-1}
        v_sub_f32 v{BM+j-1}, v{B+j-1}, v{B+9-j-1}''')
    g(f'v_add_f32 v106, v{X}, v{X+9}\nv_sub_f32 v107, v{X}, v{X+9}')
    g('v_mul_u32_u24 v3, 144, v1\nv_lshl_add_u32 v3, v2, 2, v3')
    for k in range(10):
        a, bb, e = (AP, BM, 106) if k % 2 == 0 else (AM, BP, 107)
        g(f'v_fmamk_f32 v74, v{a}, {fl(C18(k))}, v{e}')
        for j in range(2, 5): g(f'v_fmac_f32 v74, {fl(C18(j*k))}, v{a+j-1}')
        c, s_ = 28 + 2 * k, 29 + 2 * k
        if k == 0:
            g(f'v_mul_f32 v74, {fl(1/math.sqrt(18))}, v74\nv_cvt_pk_f16_f32 v78, v74, 0')
        elif k == 9:
            g(f'v_mul_f32 v76, v74, v{c}\nv_mul_f32 v77, v74, v{s_}\nv_cvt_pk_f16_f32 v78, v76, -v77')
        else:
            g(f'v_mul_f32 v75, {fl(-S18(k))}, v{bb}')
            for j in range(2, 5): g(f'v_fmac_f32 v75, {fl(-S18(j*k))}, v{bb+j-1}')
            g(f'''v_mul_f32 v76, v74, v{c}
            v_mul_f32 v77, v75, v{c}
            v_fmac_f32 v76, v75, v{s_}
            v_fma_f32 v77, -v74, v{s_}, v77
            v_cvt_pk_f16_f32 v78, v76, v77''')
        g(f'ds_write_b32 v3, v78 offset:{k*1152}')
    g.stamp()
    g('''s_lshr_b32 s12, s13, 1
    s_mul_i32 s12, s12, 6912
    v_mul_u32_u24 v3, 144, v8
    v_lshl_add_u32 v3, v9, 4, v3
    v_add_u32 v3, s12, v3
    s_waitcnt lgkmcnt(0)
    s_barrier''')
    for i in range(3):
        for t in range(2): g(f'ds_read_b128 v[{10+8*i+4*t}:{13+8*i+4*t}], v3 offset:{i*2304+t*64}')
    g('''s_lshr_b32 s12, s13, 1
    s_mul_i32 s12, s12, 6
    v_lshrrev_b32 v4, 1, v9
    v_add_u32 v4, s12, v4
    v_mul_u32_u24 v5, 18, v64
    v_and_b32 v6, 1, v9
    s_lshl_b32 s12, s3, 1
    v_add_u32 v6, s12, v6
    v_lshlrev_b32 v6, 4, v6
    v_mov_b32 v7, 0x7fffff00''')
    for i in range(3):
        g(f's_waitcnt lgkmcnt({4-2*i})')
        for (D, T) in ((74 + 8 * i, 48), (78 + 8 * i, 56)):
            g(f'v_mfma_f32_16x16x32_f16 v[{D}:{D+3}], v[{10+8*i}:{13+8*i}], v[{T}:{T+3}], 0')
            g(f'v_mfma_f32_16x16x32_f16 v[{D}:{D+3}], v[{14+8*i}:{17+8*i}], v[{T+4}:{T+7}], v[{D}:{D+3}]')
    for i in range(3):
        g(f'''v_add_u32 v36, {2*i}, v4
        v_add_u32 v37, v5, v36
        v_sub_u32 v38, 576, v37
        s_cmp_eq_u32 s14, 1
        s_cselect_b64 vcc, -1, 0
        v_cndmask_b32 v37, v37, v38, vcc
        v_lshl_add_u32 v39, v37, 13, v6
        v_cmp_lt_u32 vcc, 9, v36
        s_nop 1
        v_cndmask_b32 v39, v39, v7, vcc''')
        g(f'''v_cmp_eq_u32 s[24:25], 9, v36
        v_cmp_eq_u32 s[26:27], 0, v36
        v_cmp_ne_u32 vcc, 0x120, v37
        s_nop 1
        s_and_b64 s[26:27], s[26:27], vcc
        s_or_b64 s[24:25], s[24:25], s[26:27]
        s_cmp_eq_u32 s14, 1
        s_cselect_b64 vcc, s[24:25], 0
        v_cndmask_b32 v{40+i}, v39, v7, vcc''')
    g.stamp()
    g('s_nop 7')
    for i in range(3):
        D = 74 + 8 * i
        g(f'''v_cvt_pk_f16_f32 v{D}, v{D}, v{D+1}
        v_cvt_pk_f16_f32 v{D+1}, v{D+2}, v{D+3}
        v_cvt_pk_f16_f32 v{D+2}, v{D+4}, v{D+5}
        v_cvt_pk_f16_f32 v{D+3}, v{D+6}, v{D+7}
        buffer_store_dwordx4 v[{D}:{D+3}], v{40+i}, s[20:23], 0 offen''')
    g.stamp_out(0, 10)
    g('s_endpgm')
    g.ns = 0
    g.lab('K1_TR')
    g(f'''s_sub_u32 s3, s2, 256
    s_lshl_b32 s12, s3, 8
    v_add_u32 v1, s12, v0
    s_mov_b32 s12, {(2**32 + 288)//289}
    v_mul_hi_u32 v2, v1, s12
    v_mul_u32_u24 v3, 289, v2
    v_sub_u32 v3, v1, v3
    v_and_b32 v4, 63, v2
    v_lshrrev_b32 v5, 6, v2
    v_lshl_add_u32 v6, v5, 10, v4
    v_mul_u32_u24 v6, 578, v6
    v_lshl_add_u32 v6, v3, 1, v6
    s_waitcnt lgkmcnt(0)''')
    g.srd(16, 6, 2048 * 578)
    g.srd(20, 8, 2048 * 578)
    g.srd(24, 10, COLB, WT_OFF)
    g.srd(28, 10, 580 * 4, WMAX_OFF)
    g.srd(32, 10, NREP * 1152 * 4, ACC_OFF)
    g.srd(36, 10, 24576, KEY_OFF)
    g.stamp()
    for q in range(16):
        g(f's_mov_b32 s13, {q*36992}')
        g(f'buffer_load_ushort v{10+q}, v6, s[16:19], s13 offen\nbuffer_load_ushort v{30+q}, v6, s[20:23], s13 offen')
    g('''v_lshrrev_b32 v7, 4, v4
    v_lshlrev_b32 v7, 6, v7
    v_and_b32 v8, 15, v4
    v_add_u32 v7, v7, v8
    v_lshlrev_b32 v7, 5, v7
    v_lshl_add_u32 v7, v5, 4, v7
    v_lshl_add_u32 v7, v3, 13, v7
    v_mov_b32 v8, 0x7fff0000
    v_cmp_le_u32 vcc, 0x9080, v1
    v_mov_b32 v50, 0
    v_mov_b32 v51, 0
    v_cndmask_b32 v7, v7, v8, vcc
    v_mov_b32 v52, 0
    v_mov_b32 v53, 0
    v_lshlrev_b32 v9, 4, v1
    buffer_store_dwordx4 v[50:53], v9, s[32:35], 0 offen
    v_subrev_u32 v9, 0x9000, v9
    buffer_store_dwordx4 v[50:53], v9, s[36:39], 0 offen
    s_waitcnt vmcnt(2)''')
    for q in range(16):
        g(f'v_max_u32 v50, v50, v{10+q}' if False else f'v_lshl_or_b32 v{10+q}, v{30+q}, 16, v{10+q}')
    g.stamp()
    g('v_and_b32 v54, 0x7fff7fff, v10')
    for q in range(1, 16): g(f'v_and_b32 v55, 0x7fff7fff, v{10+q}\nv_pk_max_u16 v54, v54, v55')
    for gg in range(4): g(f'buffer_store_dwordx4 v[{10+4*gg}:{13+4*gg}], v7, s[24:27], 0 offen offset:{512*gg}')
    g('v_lshrrev_b32 v55, 16, v54\nv_and_b32 v54, 0xffff, v54\nv_max_u32 v54, v54, v55')
    g.red64_to_s(54, 55, 13, 14)
    g('''v_lshrrev_b32 v56, 6, v0
    s_lshl_b32 s14, s3, 2
    v_add_lshl_u32 v56, v56, s14, 2
    v_mov_b32 v57, s13
    v_and_b32 v58, 63, v0
    v_cmp_eq_u32 vcc, 0, v58
    s_and_saveexec_b64 s[14:15], vcc
    buffer_store_dword v57, v56, s[28:31], 0 offen''')
    g.stamp_out(0, 10)
    g.lab('K1_END')
    g('s_endpgm')
    g.lab('K1_PF')
    pref(g, 408, PF1, 'K1_END')
    return g.text(), 108
```

```python
from gen_common import *
from gen_k4 import moe
def k3():
    g = G()
    g('''s_cmp_ge_u32 s2, 256
    s_cbranch_scc1 MOE
    s_load_dwordx2 s[4:5], s[0:1], 0
    s_load_dwordx2 s[6:7], s[0:1], 32
    s_load_dwordx2 s[8:9], s[0:1], 64
    s_load_dwordx2 s[10:11], s[0:1], 80
    s_and_b32 s3, s2, 7
    s_lshl_b32 s3, s3, 5
    s_lshr_b32 s12, s2, 3
    s_add_u32 s3, s3, s12
    v_lshrrev_b32 v1, 5, v0
    v_and_b32 v2, 31, v0
    v_lshrrev_b32 v6, 6, v0
    v_and_b32 v7, 63, v0
    v_and_b32 v8, 15, v0
    v_readfirstlane_b32 s13, v6
    v_lshrrev_b32 v9, 4, v7
    s_lshl_b32 s12, s3, 3
    v_add_u32 v3, s12, v1
    v_mul_u32_u24 v3, 1152, v3
    v_lshl_add_u32 v3, v2, 1, v3
    v_lshlrev_b32 v4, 1, v2
    v_lshrrev_b32 v5, 1, v0
    v_lshlrev_b32 v5, 13, v5
    v_and_b32 v110, 1, v0
    v_lshl_add_u32 v5, v110, 4, v5
    s_lshl_b32 s14, s3, 5
    s_waitcnt lgkmcnt(0)''')
    g.srd(16, 4, 2048 * 1152); g.srd(20, 6, 1152); g.srd(24, 8, 2048 * 1152)
    g.srd(28, 10, COLB, YT_OFF); g.srd(32, 10, 580 * 4, WMAX_OFF); g.srd(36, 10, 2048 * 1152, H_OFF)
    g.srd(40, 10, 8192, KEY_OFF); g.srd(44, 10, 2048 * 8, STAT_OFF)
    Y = 10
    g.stamp()
    for i in range(3):
        g(f's_add_u32 s15, s14, {i*128*8192}\nbuffer_load_dwordx4 v[{Y+4*i}:{Y+4*i+3}], v5, s[28:31], s15 offen')
    g.wscale_load(112, 7, 32)
    X, WR = 22, 40
    for d2 in range(18): g(f'buffer_load_ushort v{X+d2}, v3, s[16:19], 0 offen offset:{64*d2}')
    for d2 in range(18): g(f'buffer_load_ushort v{WR+d2}, v4, s[20:23], 0 offen offset:{64*d2}')
    g('''v_lshrrev_b32 v58, 7, v0
    v_mul_u32_u24 v58, 72, v58
    v_bfe_u32 v59, v0, 4, 3
    v_add_u32 v58, v58, v59
    v_mul_u32_u24 v58, 144, v58
    v_lshl_add_u32 v59, v8, 2, 64
    v_and_b32 v60, 0x8f, v0
    v_cmp_eq_u32 vcc, 0, v60
    v_mov_b32 v60, 0x80
    v_mov_b32 v61, 0
    v_cndmask_b32 v59, v59, v60, vcc
    v_add_u32 v58, v58, v59
    ds_write_b32 v58, v61''')
    for i in range(3):
        g(f'''v_lshrrev_b32 v64, 1, v0
        v_add_u32 v64, {128*i}, v64
        v_min_u32 v64, 0x121, v64
        v_mul_u32_u24 v65, {(65536+17)//18}, v64
        v_lshrrev_b32 v65, 16, v65
        v_mul_u32_u24 v66, 18, v65
        v_sub_u32 v66, v64, v66
        v_cmp_lt_u32 vcc, 9, v66
        v_sub_u32 v67, 18, v66
        v_sub_u32 v68, 31, v65
        v_cndmask_b32 v66, v66, v67, vcc
        v_cndmask_b32 v65, v65, v68, vcc
        v_mov_b32 v67, 0x80000000
        v_cndmask_b32 v{61+i}, 0, v67, vcc
        v_lshlrev_b32 v66, 1, v66
        v_add_u32 v66, v66, v110
        v_mul_u32_u24 v66, 576, v66
        v_lshl_add_u32 v{58+i}, v65, 2, v66''')
    g('''v_cmp_lt_u32 vcc, 65, v0
    v_mov_b32 v64, 0x84
    s_nop 0
    v_cndmask_b32 v60, v60, v64, vcc''')
    g('''v_lshrrev_b32 v64, 2, v8
    v_lshlrev_b32 v64, 1, v64
    v_bfe_u32 v65, v8, 1, 1
    v_add_u32 v64, v64, v65
    s_lshl_b32 s12, s13, 3
    v_add_u32 v64, s12, v64
    v_mul_u32_u24 v65, 0x8000, v65
    v_lshl_or_b32 v65, v65, 16, v65
    v_cvt_f32_u32 v64, v64
    v_mul_f32 v64, 0x3d000000, v64
    v_lshlrev_b32 v66, 2, v9
    v_cvt_f32_u32 v66, v66
    v_and_b32 v67, 1, v8
    v_cmp_eq_u32 s[48:49], 1, v67''')
    for jj in range(4):
        g(f'v_add_f32 v67, {float(jj)}, v66\nv_mul_f32 v67, v67, v64')
        g.sincos(68, 69, 67, fl(1 / math.sqrt(32)))
        g(f'''v_cvt_pk_f16_f32 v78, v68, -v69
        v_cvt_pk_f16_f32 v79, v69, v68
        v_cndmask_b32 v{70+jj}, v78, v79, s[48:49]
        v_xor_b32 v{74+jj}, v65, v{70+jj}''')
    g('v_cvt_f32_u32 v64, v2')
    for k in range(1, 10):
        g(f'v_mul_f32 v65, {fl(k/576)}, v64')
        g.sincos(78 + 2 * k, 79 + 2 * k, 65)
    g.stamp()
    g('s_waitcnt vmcnt(39)')
    g.stamp()
    for i in range(3):
        for r in range(4):
            g(f'v_xor_b32 v{Y+4*i+r}, v{61+i}, v{Y+4*i+r}\nds_write_b32 v{58+i}, v{Y+4*i+r} offset:{144*r}')
    g('''v_mul_u32_u24 v58, 144, v8
    v_lshl_add_u32 v58, v9, 4, v58
    v_and_b32 v59, 7, v8
    v_lshlrev_b32 v59, 5, v59
    v_lshl_add_u32 v59, v9, 1, v59
    v_add_u32 v59, s12, v59
    v_mul_u32_u24 v59, 80, v59
    v_lshrrev_b32 v60, 3, v8
    v_lshl_add_u32 v59, v60, 3, v59
    v_add_u32 v59, 11520, v59
    v_mul_u32_u24 v60, 80, v0
    v_add_u32 v60, 11520, v60
    s_waitcnt lgkmcnt(0)
    s_barrier''')
    g.stamp()
    BB = 126
    for nt in range(5):
        for t in range(2): g(f'ds_read_b128 v[{BB+8*nt+4*t}:{BB+8*nt+4*t+3}], v58 offset:{2304*nt+64*t}')
    g('s_waitcnt vmcnt(36)')
    g.wscale_reduce(112, 50, 51)
    C = 2 * 0 + 166
    for nt in range(5):
        g(f'v_mfma_f32_16x16x32_f16 v[{C+4*nt}:{C+4*nt+3}], v[70:73], v[{BB+8*nt}:{BB+8*nt+3}], 0')
        g(f'v_mfma_f32_16x16x32_f16 v[{C+4*nt}:{C+4*nt+3}], v[74:77], v[{BB+8*nt+4}:{BB+8*nt+7}], v[{C+4*nt}:{C+4*nt+3}]')
    g(f's_lshl_b32 s50, s50, 23\nv_mov_b32 v64, s50\nv_mul_f32 v64, {fl(1/math.sqrt(18))}, v64\nv_add_f32 v65, v64, v64')
    for k in range(1, 10):
        sc = 64 if k == 9 else 65
        g(f'v_mul_f32 v{78+2*k}, v{sc}, v{78+2*k}\nv_mul_f32 v{79+2*k}, v{sc}, v{79+2*k}')
    for nt in range(5):
        g(f'ds_write_b64 v59, v[{C+4*nt}:{C+4*nt+1}] offset:{16*nt}\nds_write_b64 v59, v[{C+4*nt+2}:{C+4*nt+3}] offset:{16*nt+80}')
    g('s_waitcnt lgkmcnt(0)\ns_barrier')
    V = 126
    g.stamp()
    for i in range(5): g(f'ds_read_b128 v[{V+4*i}:{V+4*i+3}], v60 offset:{16*i}')
    g('s_waitcnt vmcnt(0)')
    for d2 in range(18): g(f'v_lshlrev_b32 v{X+d2}, 16, v{X+d2}\nv_lshlrev_b32 v{WR+d2}, 16, v{WR+d2}')
    g('s_waitcnt lgkmcnt(0)')
    g(f'v_mul_f32 v{V}, v64, v{V}')
    for k in range(1, 10):
        c, s_, vr, vi = 78 + 2 * k, 79 + 2 * k, V + 2 * k, V + 2 * k + 1
        if k < 9: g(f'v_mul_f32 v66, v{vr}, v{s_}')
        g(f'v_mul_f32 v{vr}, v{vr}, v{c}\nv_fma_f32 v{vr}, -v{vi}, v{s_}, v{vr}')
        if k < 9: g(f'v_fma_f32 v{vi}, v{vi}, v{c}, v66')
    PE, PO, QE, QO = 146, 151, 156, 160
    for j in range(5):
        g(f'v_fmamk_f32 v{PE+j}, v{V+4}, {fl(C18(2*j))}, v{V}')
        for k in (4, 6, 8): g(f'v_fmac_f32 v{PE+j}, {fl(C18(k*j))}, v{V+2*k}')
        g(f'v_mul_f32 v{PO+j}, {fl((-1.0)**j)}, v{V+18}')
        for k in (1, 3, 5, 7): g(f'v_fmac_f32 v{PO+j}, {fl(C18(k*j))}, v{V+2*k}')
    for j in range(1, 5):
        g(f'v_mul_f32 v{QE+j-1}, {fl(S18(2*j))}, v{V+5}')
        for k in (4, 6, 8): g(f'v_fmac_f32 v{QE+j-1}, {fl(S18(k*j))}, v{V+2*k+1}')
        g(f'v_mul_f32 v{QO+j-1}, {fl(S18(j))}, v{V+3}')
        for k in (3, 5, 7): g(f'v_fmac_f32 v{QO+j-1}, {fl(S18(k*j))}, v{V+2*k+1}')
    Yv = 166
    g(f'v_add_f32 v{Yv}, v{PE}, v{PO}\nv_sub_f32 v{Yv+9}, v{PE}, v{PO}')
    for j in range(1, 5):
        g(f'''v_add_f32 v66, v{PE+j}, v{PO+j}
        v_sub_f32 v67, v{PE+j}, v{PO+j}
        v_add_f32 v68, v{QO+j-1}, v{QE+j-1}
        v_sub_f32 v69, v{QO+j-1}, v{QE+j-1}
        v_sub_f32 v{Yv+j}, v66, v68
        v_add_f32 v{Yv+18-j}, v66, v68
        v_sub_f32 v{Yv+9-j}, v67, v69
        v_add_f32 v{Yv+9+j}, v67, v69''')
    g('v_mul_u32_u24 v4, 1152, v1\nv_lshl_add_u32 v4, v2, 1, v4')
    for i in range(0, 18, 2):
        g.rbf(Yv + i, Yv + i + 1)
        g(f'v_add_f32 v{X+i}, v{X+i}, v{Yv+i}\nv_add_f32 v{X+i+1}, v{X+i+1}, v{Yv+i+1}')
        g.rbf(X + i, X + i + 1)
        g(f'ds_write_b16_d16_hi v4, v{X+i} offset:{64*i}\nds_write_b16_d16_hi v4, v{X+i+1} offset:{64*i+64}')
    g.stamp()
    g.ln_stats(X, 18, 70, 71, 72, 73)
    g.ln_apply(X, Yv, 18, 70, 71)
    g(f'v_mul_f32 v74, v{Yv}, v{WR}')
    for i in range(1, 18): g(f'v_fmac_f32 v74, v{Yv+i}, v{WR+i}')
    for i in range(0, 18, 2):
        g(f'''v_add_f32 v{Yv+i}, v{Yv+i}, v{X+i}
        v_add_f32 v{Yv+i+1}, v{Yv+i+1}, v{X+i+1}
        v_cvt_pk_bf16_f32 v{Yv+i}, v{Yv+i}, v{Yv+i+1}
        ds_write_b16 v4, v{Yv+i} offset:{32000+64*i}
        ds_write_b16_d16_hi v4, v{Yv+i} offset:{32000+64*i+64}''')
    g.red32(74, 72)
    g('''v_cvt_pk_bf16_f32 v74, v74, v74
    v_and_b32 v74, 0xffff0000, v74
    v_ashrrev_i32 v75, 31, v74
    v_or_b32 v75, 0x80000000, v75
    v_xor_b32 v74, v74, v75
    v_and_b32 v74, 0xffff0000, v74
    s_lshl_b32 s12, s3, 3
    v_add_u32 v75, s12, v1
    v_sub_u32 v76, 0xffff, v75
    v_or_b32 v74, v74, v76
    v_lshlrev_b32 v76, 2, v75
    v_lshlrev_b32 v77, 3, v75
    v_lshlrev_b32 v4, 4, v0
    v_mov_b32 v5, 0x7fff0000
    v_cmp_lt_u32 vcc, 63, v0
    s_mul_i32 s12, s3, 9216
    s_add_u32 s13, s12, 0x1000
    v_add_u32 v6, 0x1000, v4
    v_cndmask_b32 v5, v6, v5, vcc
    v_cmp_eq_u32 vcc, 0, v2
    s_and_saveexec_b64 s[14:15], vcc
    buffer_store_dword v74, v76, s[40:43], 0 offen sc1
    s_mov_b64 exec, s[14:15]
    s_waitcnt lgkmcnt(0)
    s_barrier''')
    for i in range(3):
        g(f'ds_read_b128 v[{10+8*i}:{13+8*i}], v4 offset:{4096*i}\nds_read_b128 v[{14+8*i}:{17+8*i}], v4 offset:{32000+4096*i}')
    for i in range(3):
        va, so = (4, 12) if i == 0 else ((4, 13) if i == 1 else (5, 13))
        g(f'''s_waitcnt lgkmcnt({5-2*i})
        buffer_store_dwordx4 v[{10+8*i}:{13+8*i}], v{va}, s[36:39], s{so} offen sc1
        s_waitcnt lgkmcnt({4-2*i})
        buffer_store_dwordx4 v[{14+8*i}:{17+8*i}], v{va}, s[24:27], s{so} offen sc1''')
    g('''v_or_b32 v70, 1, v70
    s_waitcnt vmcnt(0)
    s_barrier
    v_cmp_eq_u32 vcc, 0, v2
    s_and_saveexec_b64 s[14:15], vcc
    buffer_store_dwordx2 v[70:71], v77, s[44:47], 0 offen sc1''')
    g.lab('K3_DONE')
    g.stamp_out(2, 10)
    g('s_endpgm')
    g.ns = 0
    g.lab('MOE')
    moe(g)
    return g.text(), 232
```

```python
from gen_common import *
NW4 = 144
def moe(g):
    g(f'''s_sub_u32 s61, s2, 256
    s_cmp_ge_u32 s61, {NW4}
    s_cbranch_scc1 K4_END
    s_load_dwordx4 s[4:7], s[0:1], 40
    s_load_dwordx4 s[8:11], s[0:1], 56
    s_load_dwordx4 s[12:15], s[0:1], 72''')
    slicemap(g, 60, 61, 3)
    g(f'''    v_and_b32 v1, 7, v0
    v_lshrrev_b32 v2, 3, v0
    v_mul_u32_u24 v3, 9216, v2
    v_lshl_add_u32 v3, v1, 3, v3
    s_lshl_b32 s3, s60, 6
    v_add_u32 v3, s3, v3
    v_and_b32 v7, 63, v0
    v_lshrrev_b32 v6, 6, v0
    v_and_b32 v8, 15, v0
    v_readfirstlane_b32 s62, v6
    v_lshrrev_b32 v9, 4, v7
    v_lshlrev_b32 v4, 4, v0
    s_mul_i32 s63, s60, 36864
    s_waitcnt lgkmcnt(0)''')
    g.srd(16, 4, 576 * 9216); g.srd(20, 6, 576 * 9216); g.srd(24, 8, 4608 * 1152); g.srd(28, 10, 2048 * 1152)
    g.srd(36, 14, 8192, KEY_OFF); g.srd(40, 14, 2048 * 1152, H_OFF)
    g.srd(44, 14, NREP * 4608, ACC_OFF); g.srd(48, 14, 2048 * 8, STAT_OFF)
    g.stamp()
    WG, WU, WD, BG, BD = 10, 46, 82, 120, 192
    for i in range(18):
        g(f's_mov_b32 s3, {i*294912}\nbuffer_load_dwordx2 v[{WG+2*i}:{WG+2*i+1}], v3, s[16:19], s3 offen\nbuffer_load_dwordx2 v[{WU+2*i}:{WU+2*i+1}], v3, s[20:23], s3 offen')
    for i in range(9):
        g(f's_add_u32 s3, s63, {i*4096}\nbuffer_load_dwordx4 v[{WD+4*i}:{WD+4*i+3}], v4, s[24:27], s3 offen')
    g.srd(32, 12, 256)
    g('''v_mul_u32_u24 v3, 136, v2
    v_lshl_add_u32 v3, v1, 3, v3
    v_mul_u32_u24 v5, 1088, v9
    v_lshrrev_b32 v6, 3, v8
    v_lshl_add_u32 v5, v6, 6, v5
    v_lshl_add_u32 v5, v1, 1, v5
    s_lshl_b32 s3, s62, 4
    v_add_u32 v5, s3, v5''')
    for rho in range(3):
        g(f's_waitcnt vmcnt({45-12*(rho+1)})')
        for i in range(6):
            ii = 6 * rho + i
            g(f'ds_write_b64 v3, v[{WG+2*ii}:{WG+2*ii+1}] offset:{4352*i}\nds_write_b64 v3, v[{WU+2*ii}:{WU+2*ii+1}] offset:{4352*i+64}')
        g('s_waitcnt lgkmcnt(0)\ns_barrier')
        for t in range(6):
            for jj in range(8):
                r = BG + 4 * (6 * rho + t) + jj // 2
                q = 4 * t + jj // 2
                tm = WG + 12 * rho + q if q < 12 else WU + 12 * rho + q - 12
                g(f'ds_read_u16 v{tm if jj & 1 else r}, v5 offset:{4352*t+136*jj}')
        g('s_waitcnt lgkmcnt(0)\ns_barrier')
        for q in range(24):
            r = BG + 24 * rho + q
            tm = WG + 12 * rho + q if q < 12 else WU + 12 * rho + q - 12
            g(f'v_lshl_or_b32 v{r}, v{tm}, 16, v{r}')
    g('s_waitcnt vmcnt(0)')
    for i in range(9):
        g(f'''v_add_u32 v3, {256*i}, v0
        v_mul_u32_u24 v5, 14564, v3
        v_lshrrev_b32 v5, 20, v5
        v_lshlrev_b32 v3, 4, v3
        v_lshl_add_u32 v3, v5, 4, v3
        ds_write_b128 v3, v[{WD+4*i}:{WD+4*i+3}]''')
    g('''v_mul_u32_u24 v5, 9344, v9
    v_lshl_add_u32 v5, v8, 1, v5
    s_mul_i32 s3, s62, 288
    v_add_u32 v5, s3, v5
    s_waitcnt lgkmcnt(0)
    s_barrier''')
    for nt in range(9):
        for jj in range(8):
            g(f'ds_read_u16 v{(WD if jj & 1 else BD)+4*nt+jj//2}, v5 offset:{32*nt+1168*jj}')
    g('s_waitcnt lgkmcnt(0)\ns_barrier')
    for q in range(36): g(f'v_lshl_or_b32 v{BD+q}, v{WD+q}, 16, v{BD+q}')
    g.stamp()
    KY = 10
    g('''s_cmp_lg_u32 s62, 0
    s_cbranch_scc1 MOE_WAIT
    v_lshlrev_b32 v3, 4, v7
    s_movk_i32 s3, 0x1000''')
    g.lab('MOE_POLL')
    for i in range(8): g(f'buffer_load_dwordx4 v[{KY+4*i}:{KY+4*i+3}], v3, s[36:39], {"s3" if i>=4 else "0"} offen offset:{1024*(i%4)} sc1')
    g(f's_waitcnt vmcnt(0)\nv_min3_u32 v42, v{KY}, v{KY+1}, v{KY+2}')
    for i in range(3, 31, 2): g(f'v_min3_u32 v42, v42, v{KY+i}, v{KY+i+1}')
    g(f'''v_min_u32 v42, v42, v{KY+31}
    v_cmp_eq_u32 vcc, 0, v42
    s_cbranch_vccz MOE_GO
    s_sleep 8
    s_branch MOE_POLL''')
    g.lab('MOE_GO')
    g(f'v_max_u32 v44, v{KY}, v{KY+1}\nv_min_u32 v45, v{KY}, v{KY+1}')
    for i in range(2, 32): g(f'v_med3_u32 v45, v44, v45, v{KY+i}\nv_max_u32 v44, v44, v{KY+i}')
    g('v_mov_b32 v46, v44')
    g.red64_to_s(46, 47, 52, 54)
    g('v_cmp_eq_u32 vcc, s52, v44\ns_nop 1\nv_cndmask_b32 v46, v44, v45, vcc')
    g.red64_to_s(46, 47, 53, 54)
    g('v_mov_b32 v46, s52\nv_mov_b32 v47, s53\nv_mov_b32 v48, 0\nds_write_b64 v48, v[46:47] offset:4096\ns_waitcnt lgkmcnt(0)')
    g.lab('MOE_WAIT')
    g('''s_barrier
    v_mov_b32 v48, 0
    ds_read_b64 v[46:47], v48 offset:4096
    v_lshlrev_b32 v49, 1, v0
    s_waitcnt lgkmcnt(0)
    v_readfirstlane_b32 s52, v46
    v_readfirstlane_b32 s53, v47
    s_nop 3
    s_and_b32 s54, s52, 0xffff
    s_sub_u32 s54, 0xffff, s54
    s_and_b32 s55, s53, 0xffff
    s_sub_u32 s55, 0xffff, s55
    s_lshl_b32 s56, s54, 3
    s_lshl_b32 s57, s55, 3
    s_mul_i32 s54, s54, 1152
    s_mul_i32 s55, s55, 1152''')
    g.lab('MOE_P2')
    g('''buffer_load_dwordx2 v[50:51], v48, s[48:51], s56 offen sc1
    buffer_load_dwordx2 v[52:53], v48, s[48:51], s57 offen sc1
    s_waitcnt vmcnt(0)
    v_and_b32 v54, v50, v52
    v_and_b32 v54, 1, v54
    v_and_b32 v50, 0xffff0000, v50
    v_and_b32 v52, 0xffff0000, v52
    v_cmp_eq_u32 vcc, 0, v54
    s_cbranch_vccz MOE_G2
    s_sleep 4
    s_branch MOE_P2''')
    g.lab('MOE_G2')
    H = 54
    for j in range(3):
        g(f'buffer_load_ushort v{H+2*j}, v49, s[40:43], s54 offen offset:{512*j} sc1\nbuffer_load_ushort v{H+2*j+1}, v49, s[40:43], s55 offen offset:{512*j} sc1')
    g.stamp()
    g('''v_and_b32 v3, 1, v8
    v_mul_u32_u24 v5, 1536, v3
    v_lshl_add_u32 v5, v9, 4, v5
    v_lshlrev_b32 v3, 6, v3
    v_lshl_add_u32 v3, v9, 4, v3
    s_waitcnt vmcnt(0)''')
    for j in range(3):
        a, b = H + 2 * j, H + 2 * j + 1
        c, d = a + 6, b + 6
        g(f'v_lshlrev_b32 v{a}, 16, v{a}\nv_lshlrev_b32 v{b}, 16, v{b}\nv_sub_f32 v{c}, v{a}, v50\nv_sub_f32 v{d}, v{b}, v52')
        g.rbf(c, d)
        g(f'v_mul_f32 v{c}, v{c}, v51\nv_mul_f32 v{d}, v{d}, v53')
        g.rbf(c, d)
        g(f'ds_write_b16_d16_hi v49, v{c} offset:{512*j}\nds_write_b16_d16_hi v49, v{d} offset:{1536+512*j}')
    g('s_waitcnt lgkmcnt(0)\ns_barrier')
    AA = 66
    for half in range(2):
        for t in range(9): g(f'ds_read_b128 v[{AA+4*t}:{AA+4*t+3}], v5 offset:{64*(9*half+t)}')
        for t in range(9):
            T = 9 * half + t
            g(f's_waitcnt lgkmcnt({8-t})\nv_mfma_f32_16x16x32_bf16 v[104:107], v[{AA+4*t}:{AA+4*t+3}], v[{BG+4*T}:{BG+4*T+3}], ' + ('0' if T == 0 else 'v[104:107]'))
        g('s_nop 1')
    g('''s_lshl_b32 s3, s62, 4
    v_lshl_add_u32 v6, v7, 1, s3
    v_mov_b32 v110, 0x200
    v_cmp_lt_u32 vcc, 7, v7
    s_nop 4
    v_cndmask_b32 v6, v6, v110, vcc''')
    g.rbf(104, 105)
    g(f'''s_nop 1
    v_mov_b32_dpp v106, v104 row_shl:8 row_mask:0xf bank_mask:0xf
    v_mov_b32_dpp v107, v105 row_shl:8 row_mask:0xf bank_mask:0xf
    v_mul_f32 v108, {fl(-1/math.log(2))}, v104
    v_mul_f32 v109, {fl(-1/math.log(2))}, v105
    v_exp_f32 v108, v108
    v_exp_f32 v109, v109
    s_nop 0
    v_add_f32 v108, 1.0, v108
    v_add_f32 v109, 1.0, v109
    v_rcp_f32 v108, v108
    v_rcp_f32 v109, v109
    s_nop 0
    v_mul_f32 v108, v108, v104
    v_mul_f32 v109, v109, v105''')
    g.rbf(108, 109)
    g('''v_mul_f32 v108, v108, v106
    v_mul_f32 v109, v109, v107
    v_cvt_pk_bf16_f32 v108, v108, v109
    ds_write_b16 v6, v108 offset:4096
    ds_write_b16_d16_hi v6, v108 offset:4160
    s_waitcnt lgkmcnt(0)
    s_barrier
    ds_read_b128 v[66:69], v3 offset:4096''')
    g(f'''s_and_b32 s3, s61, {NREP-1}
    s_mul_i32 s3, s3, 4608
    s_mul_i32 s56, s62, 576
    s_add_u32 s3, s3, s56
    v_lshlrev_b32 v6, 2, v7
    s_waitcnt lgkmcnt(0)''')
    for nt in range(9): g(f'v_mfma_f32_16x16x32_bf16 v[{70+4*nt}:{73+4*nt}], v[66:69], v[{BD+4*nt}:{BD+4*nt+3}], 0')
    g('s_mov_b64 exec, 0xffff\ns_nop 4')
    for nt in range(9):
        g(f'buffer_atomic_add_f32 v{70+4*nt}, v6, s[44:47], s3 offen offset:{64*nt} sc1\nbuffer_atomic_add_f32 v{71+4*nt}, v6, s[44:47], s3 offen offset:{2304+64*nt} sc1')
    g.stamp()
    g(f'''s_mov_b64 exec, -1
    s_waitcnt vmcnt(0)
    s_barrier
    v_mov_b32 v106, 1
    v_cmp_eq_u32 vcc, 0, v0
    s_and_saveexec_b64 s[58:59], vcc
    s_cbranch_execz K4_SKIP
    buffer_atomic_add v106, v48, s[32:35], 0 offen sc0 sc1
    s_waitcnt vmcnt(0)
    ds_write_b32 v48, v106 offset:8192''')
    g.lab('K4_SKIP')
    g(f'''s_mov_b64 exec, s[58:59]
    s_waitcnt lgkmcnt(0)
    s_barrier
    ds_read_b32 v106, v48 offset:8192
    s_waitcnt lgkmcnt(0)
    v_readfirstlane_b32 s3, v106''')
    g.stamp()
    g(f'''s_cmp_lg_u32 s3, {NW4-1}
    s_cbranch_scc1 K4_FIN
    v_lshlrev_b32 v110, 2, v0
    v_mov_b32 v106, 0x7fff0000
    v_cmp_lt_u32 vcc, 63, v0
    s_nop 1
    v_cndmask_b32 v111, v110, v106, vcc
    v_cndmask_b32 v112, v49, v106, vcc''')
    R = 120
    for rep in range(NREP):
        g(f's_mov_b32 s3, {rep*4608}\ns_mov_b32 s56, {rep*4608+2304}')
        for j in range(3):
            for tok in range(2):
                g(f'buffer_load_dword v{R+6*rep+2*j+tok}, v{110 if j<2 else 111}, s[44:47], s{3 if tok==0 else 56} offen offset:{1024*j} sc0 sc1')
    for tok, sk in ((0, 52), (1, 53)):
        g(f'''s_and_b32 s3, s{sk}, 0xffff0000
        s_ashr_i32 s56, s3, 31
        s_not_b32 s56, s56
        s_or_b32 s56, s56, 0x80000000
        s_xor_b32 s3, s3, s56
        s_and_b32 s3, s3, 0xffff0000
        v_mov_b32 v{114+tok}, s3
        v_mul_f32 v{114+tok}, {fl(-1/math.log(2))}, v{114+tok}
        v_exp_f32 v{114+tok}, v{114+tok}
        s_nop 0
        v_add_f32 v{114+tok}, 1.0, v{114+tok}
        v_rcp_f32 v{114+tok}, v{114+tok}
        s_nop 0''')
        g.rbf(114 + tok)
    g('s_waitcnt vmcnt(0)')
    for j in range(3):
        for tok in range(2):
            a = R + 2 * j + tok
            for rep in range(1, NREP): g(f'v_add_f32 v{a}, v{a}, v{R+6*rep+2*j+tok}')
            g.rbf(a)
            g(f'v_mul_f32 v{a}, v{a}, v{114+tok}')
            g.rbf(a)
            g(f'v_add_f32 v{a}, v{a}, v{H+6+2*j+tok}')
            g.rbf(a)
            g(f'v_add_f32 v{a}, v{a}, v{H+2*j+tok}\nv_cvt_pk_bf16_f32 v{a}, v{a}, v{a}')
            g(f'buffer_store_short v{a}, v{49 if j<2 else 112}, s[28:31], s{54+tok} offen offset:{512*j} sc1')
    g.lab('K4_FIN')
    g.stamp_out(2, 14)
    g.lab('K4_END')
    g('s_endpgm')
```

```python
from gen_common import *
def k1():
    g = G()
    g('''s_cmp_ge_u32 s2, 401
    s_cbranch_scc1 K1_PF
    s_load_dwordx4 s[4:7], s[0:1], 0
    s_load_dwordx2 s[8:9], s[0:1], 16
    s_load_dwordx2 s[10:11], s[0:1], 80
    s_cmp_ge_u32 s2, 256
    s_cbranch_scc1 K1_TR
    s_and_b32 s3, s2, 7
    s_lshl_b32 s3, s3, 5
    s_lshr_b32 s12, s2, 3
    s_add_u32 s3, s3, s12''')
    g('''v_lshrrev_b32 v1, 5, v0
    v_and_b32 v2, 31, v0
    s_and_b32 s12, s3, 7
    s_lshl_b32 s12, s12, 3
    v_add_u32 v3, s12, v1
    v_lshlrev_b32 v3, 5, v3
    s_lshr_b32 s12, s3, 3
    v_add_u32 v3, s12, v3
    v_mul_u32_u24 v3, 1152, v3
    v_lshl_add_u32 v3, v2, 1, v3
    s_waitcnt lgkmcnt(0)''')
    g.srd(16, 4, 2048 * 1152)
    g.srd(20, 10, COLB, XT_OFF)
    X = 10
    g.stamp()
    for d2 in range(18): g(f'buffer_load_ushort v{X+d2}, v3, s[16:19], 0 offen offset:{64*d2}')
    g('v_cvt_f32_u32 v4, v2')
    for k in range(1, 10):
        g(f'v_mul_f32 v5, {fl(k/576)}, v4')
        g.sincos(28 + 2 * k, 29 + 2 * k, 5, fl(1 / math.sqrt(18)))
    g('''v_lshrrev_b32 v6, 6, v0
    v_and_b32 v7, 63, v0
    s_nop 0
    v_readfirstlane_b32 s13, v6
    v_and_b32 v8, 15, v7
    v_lshrrev_b32 v9, 4, v7
    s_and_b32 s14, s13, 1
    s_lshl_b32 s15, s14, 4
    v_add_u32 v64, s15, v8
    v_cvt_f32_u32 v65, v64
    v_mul_f32 v65, 0x3d000000, v65
    v_lshlrev_b32 v66, 2, v9
    v_cvt_f32_u32 v66, v66
    s_mul_i32 s15, s14, 0x80008000
    v_and_b32 v67, 1, v8
    v_mul_u32_u24 v67, 0x8000, v67
    v_lshl_or_b32 v67, v67, 16, v67''')
    for jj in range(4):
        g(f'v_add_f32 v5, {float(jj)}, v66\nv_mul_f32 v5, v5, v65')
        g.sincos(68, 69, 5, fl(1 / math.sqrt(32)))
        g(f'''v_cvt_pk_f16_f32 v{48+jj}, v68, v69
        v_cvt_pk_f16_f32 v{56+jj}, -v69, v68
        v_xor_b32 v{56+jj}, s15, v{56+jj}
        v_xor_b32 v{52+jj}, v67, v{48+jj}
        v_xor_b32 v{60+jj}, v67, v{56+jj}''')
    g.stamp()
    g('s_waitcnt vmcnt(0)')
    g.stamp()
    for d2 in range(18): g(f'v_lshlrev_b32 v{X+d2}, 16, v{X+d2}')
    g.ln_stats(X, 18, 70, 71, 72, 73)
    g.ln_apply(X, X, 18, 70, 71)
    A, B = 74, 82
    for j in range(1, 9):
        g(f'v_add_f32 v{A+j-1}, v{X+j}, v{X+18-j}\nv_sub_f32 v{B+j-1}, v{X+j}, v{X+18-j}')
    AP, AM, BP, BM = 90, 94, 98, 102
    for j in range(1, 5):
        g(f'''v_add_f32 v{AP+j-1}, v{A+j-1}, v{A+9-j-1}
        v_sub_f32 v{AM+j-1}, v{A+j-1}, v{A+9-j-1}
        v_add_f32 v{BP+j-1}, v{B+j-1}, v{B+9-j-1}
        v_sub_f32 v{BM+j-1}, v{B+j-1}, v{B+9-j-1}''')
    g(f'v_add_f32 v106, v{X}, v{X+9}\nv_sub_f32 v107, v{X}, v{X+9}')
    g('v_mul_u32_u24 v3, 144, v1\nv_lshl_add_u32 v3, v2, 2, v3')
    for k in range(10):
        a, bb, e = (AP, BM, 106) if k % 2 == 0 else (AM, BP, 107)
        g(f'v_fmamk_f32 v74, v{a}, {fl(C18(k))}, v{e}')
        for j in range(2, 5): g(f'v_fmac_f32 v74, {fl(C18(j*k))}, v{a+j-1}')
        c, s_ = 28 + 2 * k, 29 + 2 * k
        if k == 0:
            g(f'v_mul_f32 v74, {fl(1/math.sqrt(18))}, v74\nv_cvt_pk_f16_f32 v78, v74, 0')
        elif k == 9:
            g(f'v_mul_f32 v76, v74, v{c}\nv_mul_f32 v77, v74, v{s_}\nv_cvt_pk_f16_f32 v78, v76, -v77')
        else:
            g(f'v_mul_f32 v75, {fl(-S18(k))}, v{bb}')
            for j in range(2, 5): g(f'v_fmac_f32 v75, {fl(-S18(j*k))}, v{bb+j-1}')
            g(f'''v_mul_f32 v76, v74, v{c}
            v_mul_f32 v77, v75, v{c}
            v_fmac_f32 v76, v75, v{s_}
            v_fma_f32 v77, -v74, v{s_}, v77
            v_cvt_pk_f16_f32 v78, v76, v77''')
        g(f'ds_write_b32 v3, v78 offset:{k*1152}')
    g.stamp()
    g('''s_lshr_b32 s12, s13, 1
    s_mul_i32 s12, s12, 6912
    v_mul_u32_u24 v3, 144, v8
    v_lshl_add_u32 v3, v9, 4, v3
    v_add_u32 v3, s12, v3
    s_waitcnt lgkmcnt(0)
    s_barrier''')
    for i in range(3):
        for t in range(2): g(f'ds_read_b128 v[{10+8*i+4*t}:{13+8*i+4*t}], v3 offset:{i*2304+t*64}')
    g('''s_lshr_b32 s12, s13, 1
    s_mul_i32 s12, s12, 6
    v_lshrrev_b32 v4, 1, v9
    v_add_u32 v4, s12, v4
    v_mul_u32_u24 v5, 18, v64
    v_and_b32 v6, 1, v9
    s_lshl_b32 s12, s3, 1
    v_add_u32 v6, s12, v6
    v_lshlrev_b32 v6, 4, v6
    v_mov_b32 v7, 0x7fffff00''')
    for i in range(3):
        g(f's_waitcnt lgkmcnt({4-2*i})')
        for (D, T) in ((74 + 8 * i, 48), (78 + 8 * i, 56)):
            g(f'v_mfma_f32_16x16x32_f16 v[{D}:{D+3}], v[{10+8*i}:{13+8*i}], v[{T}:{T+3}], 0')
            g(f'v_mfma_f32_16x16x32_f16 v[{D}:{D+3}], v[{14+8*i}:{17+8*i}], v[{T+4}:{T+7}], v[{D}:{D+3}]')
    for i in range(3):
        g(f'''v_add_u32 v36, {2*i}, v4
        v_add_u32 v37, v5, v36
        v_sub_u32 v38, 576, v37
        s_cmp_eq_u32 s14, 1
        s_cselect_b64 vcc, -1, 0
        v_cndmask_b32 v37, v37, v38, vcc
        v_lshl_add_u32 v39, v37, 13, v6
        v_cmp_lt_u32 vcc, 9, v36
        s_nop 1
        v_cndmask_b32 v39, v39, v7, vcc''')
        g(f'''v_cmp_eq_u32 s[24:25], 9, v36
        v_cmp_eq_u32 s[26:27], 0, v36
        v_cmp_ne_u32 vcc, 0x120, v37
        s_nop 1
        s_and_b64 s[26:27], s[26:27], vcc
        s_or_b64 s[24:25], s[24:25], s[26:27]
        s_cmp_eq_u32 s14, 1
        s_cselect_b64 vcc, s[24:25], 0
        v_cndmask_b32 v{40+i}, v39, v7, vcc''')
    g.stamp()
    g('s_nop 7')
    for i in range(3):
        D = 74 + 8 * i
        g(f'''v_cvt_pk_f16_f32 v{D}, v{D}, v{D+1}
        v_cvt_pk_f16_f32 v{D+1}, v{D+2}, v{D+3}
        v_cvt_pk_f16_f32 v{D+2}, v{D+4}, v{D+5}
        v_cvt_pk_f16_f32 v{D+3}, v{D+6}, v{D+7}
        buffer_store_dwordx4 v[{D}:{D+3}], v{40+i}, s[20:23], 0 offen''')
    g.stamp_out(0, 10)
    g('s_endpgm')
    g.ns = 0
    g.lab('K1_TR')
    g(f'''s_sub_u32 s3, s2, 256
    s_lshl_b32 s12, s3, 8
    v_add_u32 v1, s12, v0
    s_mov_b32 s12, {(2**32 + 288)//289}
    v_mul_hi_u32 v2, v1, s12
    v_mul_u32_u24 v3, 289, v2
    v_sub_u32 v3, v1, v3
    v_and_b32 v4, 63, v2
    v_lshrrev_b32 v5, 6, v2
    v_lshl_add_u32 v6, v5, 10, v4
    v_mul_u32_u24 v6, 578, v6
    v_lshl_add_u32 v6, v3, 1, v6
    s_waitcnt lgkmcnt(0)''')
    g.srd(16, 6, 2048 * 578)
    g.srd(20, 8, 2048 * 578)
    g.srd(24, 10, COLB, WT_OFF)
    g.srd(28, 10, 580 * 4, WMAX_OFF)
    g.srd(32, 10, 144 * 4608, P_OFF)
    g.srd(36, 10, 24576, KEY_OFF)
    g.stamp()
    for q in range(16):
        g(f's_mov_b32 s13, {q*36992}')
        g(f'buffer_load_ushort v{10+q}, v6, s[16:19], s13 offen\nbuffer_load_ushort v{30+q}, v6, s[20:23], s13 offen')
    g('''v_lshrrev_b32 v7, 4, v4
    v_lshlrev_b32 v7, 6, v7
    v_and_b32 v8, 15, v4
    v_add_u32 v7, v7, v8
    v_lshlrev_b32 v7, 5, v7
    v_lshl_add_u32 v7, v5, 4, v7
    v_lshl_add_u32 v7, v3, 13, v7
    v_mov_b32 v8, 0x7fff0000
    v_cmp_le_u32 vcc, 0x9080, v1
    v_mov_b32 v50, 0
    v_mov_b32 v51, 0
    v_cndmask_b32 v7, v7, v8, vcc
    v_mov_b32 v52, 0
    v_mov_b32 v53, 0
    v_lshlrev_b32 v9, 4, v1
    buffer_store_dwordx4 v[50:53], v9, s[36:39], 0 offen
    v_mov_b32 v60, -1
    v_mov_b32 v61, -1
    v_mov_b32 v62, -1
    v_mov_b32 v63, -1
    buffer_store_dwordx4 v[60:63], v9, s[32:35], 0 offen
    v_add_u32 v9, 0x91000, v9
    buffer_store_dwordx4 v[60:63], v9, s[32:35], 0 offen
    s_waitcnt vmcnt(3)''')
    for q in range(16):
        g(f'v_max_u32 v50, v50, v{10+q}' if False else f'v_lshl_or_b32 v{10+q}, v{30+q}, 16, v{10+q}')
    g.stamp()
    g('v_and_b32 v54, 0x7fff7fff, v10')
    for q in range(1, 16): g(f'v_and_b32 v55, 0x7fff7fff, v{10+q}\nv_pk_max_u16 v54, v54, v55')
    for gg in range(4): g(f'buffer_store_dwordx4 v[{10+4*gg}:{13+4*gg}], v7, s[24:27], 0 offen offset:{512*gg}')
    g('v_lshrrev_b32 v55, 16, v54\nv_and_b32 v54, 0xffff, v54\nv_max_u32 v54, v54, v55')
    g.red64_to_s(54, 55, 13, 14)
    g('''v_lshrrev_b32 v56, 6, v0
    s_lshl_b32 s14, s3, 2
    v_add_lshl_u32 v56, v56, s14, 2
    v_mov_b32 v57, s13
    v_and_b32 v58, 63, v0
    v_cmp_eq_u32 vcc, 0, v58
    s_and_saveexec_b64 s[14:15], vcc
    buffer_store_dword v57, v56, s[28:31], 0 offen''')
    g.stamp_out(0, 10)
    g.lab('K1_END')
    g('s_endpgm')
    g.lab('K1_PF')
    pref(g, 408, PF1, 'K1_END')
    return g.text(), 108
```

```python
from gen_common import *
NW4 = 144
def moe(g):
    g(f'''s_sub_u32 s61, s2, 256
    s_cmp_ge_u32 s61, {NW4}
    s_cbranch_scc1 K4_END
    s_load_dwordx4 s[4:7], s[0:1], 40
    s_load_dwordx4 s[8:11], s[0:1], 56
    s_load_dwordx4 s[12:15], s[0:1], 72''')
    slicemap(g, 60, 61, 3)
    g(f'''v_and_b32 v7, 63, v0
    v_lshrrev_b32 v6, 6, v0
    v_and_b32 v8, 15, v0
    v_readfirstlane_b32 s62, v6
    v_lshrrev_b32 v9, 4, v7
    v_mul_u32_u24 v3, 73728, v9
    v_lshl_add_u32 v3, v8, 2, v3
    s_lshl_b32 s3, s60, 6
    v_add_u32 v3, s3, v3
    s_cmp_ge_u32 s62, 2
    s_cselect_b32 s34, 0x7fff0000, 0
    v_add_u32 v5, s34, v3
    s_mul_i32 s63, s60, 36864
    s_add_u32 s35, s63, 4608
    v_mul_u32_u24 v4, 9216, v9
    s_lshl_b32 s3, s62, 5
    v_lshl_add_u32 v6, v8, 1, v4
    v_add_u32 v6, s3, v6
    v_add_u32 v6, 0x400, v6
    v_lshl_add_u32 v4, v8, 4, v4
    s_lshl_b32 s3, s62, 8
    v_add_u32 v4, s3, v4
    s_mul_i32 s34, s62, 294912
    s_mov_b32 s32, 0x05040100
    s_mov_b32 s33, 0x07060302
    s_waitcnt lgkmcnt(0)''')
    g.srd(16, 4, 576 * 9216); g.srd(20, 6, 576 * 9216); g.srd(24, 8, 4608 * 1152); g.srd(28, 10, 2048 * 1152)
    g.srd(36, 14, 8192, KEY_OFF); g.srd(40, 14, 2048 * 1152, H_OFF)
    g.srd(44, 14, 144 * 4608, P_OFF); g.srd(48, 14, 2048 * 8, STAT_OFF)
    g.stamp()
    GB, DR, DU, BD = 10, 94, 126, 134
    blk = lambda G, odd: GB + 4 + 8 * G + 4 * odd
    for i in range(5):
        for jj in range(8):
            g(f's_add_u32 s3, s34, {1179648*i+9216*jj}')
            for m in range(2): g(f'buffer_load_dword v{blk(2*i+m, jj&1)+jj//2}, v{5 if i==4 else 3}, s[{16+4*m}:{19+4*m}], s3 offen')
    for jj in range(8):
        g(f'buffer_load_dwordx4 v[{DR+4*jj}:{DR+4*jj+3}], v4, s[24:27], s{63 if jj<4 else 35} offen offset:{1152*(jj&3)}')
        g(f'buffer_load_ushort v{DU+jj}, v6, s[24:27], s{63 if jj<4 else 35} offen offset:{1152*(jj&3)}')
    OP = {}
    for i in range(5):
        g(f's_waitcnt vmcnt({min(63, 96-16*(i+1))})')
        for m in range(2):
            G_ = 2 * i + m
            X = GB if G_ == 0 else blk(G_ - 1, 0)
            A, B = blk(G_, 0), blk(G_, 1)
            for p in range(4): g(f'v_perm_b32 v{X+p}, v{B+p}, v{A+p}, s32\nv_perm_b32 v{B+p}, v{B+p}, v{A+p}, s33')
            OP[(i, m, 0)], OP[(i, m, 1)] = X, B
    g('s_waitcnt vmcnt(0)')
    g.stamp()
    for q in range(4):
        for e in range(2):
            for p in range(4): g(f'v_perm_b32 v{BD+4*(2*q+e)+p}, v{DR+8*p+4+q}, v{DR+8*p+q}, s{32+e}')
    for p in range(4): g(f'v_lshl_or_b32 v{BD+32+p}, v{DU+2*p+1}, 16, v{DU+2*p}')
    g('''v_and_b32 v1, 1, v7
    v_bfe_u32 v2, v7, 1, 2
    v_lshl_add_u32 v1, v1, 2, v2
    s_lshl_b32 s3, s61, 3
    s_cmp_ge_u32 s61, 72
    s_cselect_b32 s34, 576, 0
    s_cselect_b32 s35, 1536, 0
    s_cselect_b32 s63, 1, 0
    s_sub_u32 s3, s3, s34
    v_add_u32 v1, s3, v1
    v_and_b32 v2, 0x180, v1
    v_bfe_u32 v3, v1, 4, 3
    v_add_u32 v2, v2, v3
    v_and_b32 v3, 15, v1
    v_lshl_add_u32 v2, v3, 3, v2
    v_cmp_lt_u32 vcc, 0x1ff, v1
    s_nop 1
    v_cndmask_b32 v2, v2, v1, vcc
    v_lshlrev_b32 v2, 1, v2
    v_add_u32 v1, s35, v2''')
    g.stamp()
    KY = 170
    g('''s_cmp_lg_u32 s62, 0
    s_cbranch_scc1 MOE_WAIT
    v_lshlrev_b32 v3, 4, v7
    s_movk_i32 s3, 0x1000''')
    g.lab('MOE_POLL')
    for i in range(8): g(f'buffer_load_dwordx4 v[{KY+4*i}:{KY+4*i+3}], v3, s[36:39], {"s3" if i>=4 else "0"} offen offset:{1024*(i%4)} sc1')
    g(f's_waitcnt vmcnt(0)\nv_min3_u32 v202, v{KY}, v{KY+1}, v{KY+2}')
    for i in range(3, 31, 2): g(f'v_min3_u32 v202, v202, v{KY+i}, v{KY+i+1}')
    g(f'''v_min_u32 v202, v202, v{KY+31}
    v_cmp_eq_u32 vcc, 0, v202
    s_cbranch_vccz MOE_GO
    s_sleep 8
    s_branch MOE_POLL''')
    g.lab('MOE_GO')
    g(f'v_max_u32 v204, v{KY}, v{KY+1}\nv_min_u32 v205, v{KY}, v{KY+1}')
    for i in range(2, 32): g(f'v_med3_u32 v205, v204, v205, v{KY+i}\nv_max_u32 v204, v204, v{KY+i}')
    g('v_mov_b32 v206, v204')
    g.red64_to_s(206, 207, 52, 54)
    g('v_cmp_eq_u32 vcc, s52, v204\ns_nop 1\nv_cndmask_b32 v206, v204, v205, vcc')
    g.red64_to_s(206, 207, 53, 54)
    g('v_mov_b32 v206, s52\nv_mov_b32 v207, s53\nv_mov_b32 v208, 0\nds_write_b64 v208, v[206:207] offset:4096\ns_waitcnt lgkmcnt(0)')
    g.lab('MOE_WAIT')
    g('''s_barrier
    v_mov_b32 v208, 0
    ds_read_b64 v[206:207], v208 offset:4096
    v_lshlrev_b32 v209, 1, v0
    s_waitcnt lgkmcnt(0)
    v_readfirstlane_b32 s52, v206
    v_readfirstlane_b32 s53, v207
    s_nop 3
    s_and_b32 s54, s52, 0xffff
    s_sub_u32 s54, 0xffff, s54
    s_and_b32 s55, s53, 0xffff
    s_sub_u32 s55, 0xffff, s55
    s_lshl_b32 s56, s54, 3
    s_lshl_b32 s57, s55, 3
    s_mul_i32 s54, s54, 1152
    s_mul_i32 s55, s55, 1152''')
    g.lab('MOE_P2')
    g('''buffer_load_dwordx2 v[210:211], v208, s[48:51], s56 offen sc1
    buffer_load_dwordx2 v[212:213], v208, s[48:51], s57 offen sc1
    s_waitcnt vmcnt(0)
    v_and_b32 v214, v210, v212
    v_and_b32 v214, 1, v214
    v_and_b32 v210, 0xffff0000, v210
    v_and_b32 v212, 0xffff0000, v212
    v_cmp_eq_u32 vcc, 0, v214
    s_cbranch_vccz MOE_G2
    s_sleep 4
    s_branch MOE_P2''')
    g.lab('MOE_G2')
    H = 214
    g('v_mov_b32 v3, 0x7fff0000\nv_cmp_lt_u32 vcc, 63, v0\ns_nop 1\nv_cndmask_b32 v3, v209, v3, vcc')
    for j in range(3):
        g(f'buffer_load_ushort v{H+2*j}, v{209 if j<2 else 3}, s[40:43], s54 offen offset:{512*j} sc1\nbuffer_load_ushort v{H+2*j+1}, v{209 if j<2 else 3}, s[40:43], s55 offen offset:{512*j} sc1')
    g.stamp()
    g('''v_and_b32 v3, 1, v8
    v_mul_u32_u24 v5, 1536, v3
    v_lshl_add_u32 v5, v9, 4, v5
    s_lshl_b32 s3, s62, 6
    v_add_u32 v5, s3, v5
    v_lshlrev_b32 v3, 6, v3
    v_lshl_add_u32 v3, v9, 4, v3
    s_lshl_b32 s3, s62, 7
    v_add_u32 v3, s3, v3
    v_lshl_add_u32 v4, v7, 1, s3
    s_lshl_b32 s3, s62, 9
    s_add_u32 s3, s3, 0x1000
    v_lshl_add_u32 v6, v8, 3, s3
    v_lshrrev_b32 v94, 5, v7
    v_and_b32 v95, 31, v7
    v_lshlrev_b32 v94, 8, v94
    v_lshl_add_u32 v94, v95, 2, v94
    v_add_u32 v94, 0x1000, v94
    v_add_u32 v95, 0x400, v94
    s_cmp_lg_u32 s63, 0
    s_cselect_b32 s52, s53, s52
    s_cselect_b32 s54, s55, s54
    s_waitcnt vmcnt(0)''')
    for j in range(3):
        a, b = H + 2 * j, H + 2 * j + 1
        c, d = a + 6, b + 6
        g(f'ds_write_b16 v209, v{a} offset:{12288+512*j}\nds_write_b16 v209, v{b} offset:{12288+1536+512*j}')
        g(f'v_lshlrev_b32 v{c}, 16, v{a}\nv_lshlrev_b32 v{d}, 16, v{b}\nv_sub_f32 v{c}, v{c}, v210\nv_sub_f32 v{d}, v{d}, v212')
        g.rbf(c, d)
        g(f'v_mul_f32 v{c}, v{c}, v211\nv_mul_f32 v{d}, v{d}, v213\nv_cvt_pk_bf16_f32 v{c}, v{c}, v{d}')
        g(f'ds_write_b16 v209, v{c} offset:{512*j}\nds_write_b16_d16_hi v209, v{c} offset:{1536+512*j}')
    g('s_waitcnt lgkmcnt(0)\ns_barrier')
    AA, AC = 170, 190
    for i in range(5): g(f'ds_read_b128 v[{AA+4*i}:{AA+4*i+3}], v5 offset:{256*i}')
    g('ds_read_u16 v96, v1 offset:12288\nds_read_u16 v97, v1')
    for i in range(5):
        g(f's_waitcnt lgkmcnt({6-i})')
        for m in range(2):
            for c in range(2):
                D = AC + 8 * m + 4 * c; B = OP[(i, m, c)]
                g(f'v_mfma_f32_16x16x32_bf16 v[{D}:{D+3}], v[{AA+4*i}:{AA+4*i+3}], v[{B}:{B+3}], ' + ('0' if i == 0 else f'v[{D}:{D+3}]'))
    g(f'''s_and_b32 s3, s52, 0xffff0000
    s_ashr_i32 s56, s3, 31
    s_not_b32 s56, s56
    s_or_b32 s56, s56, 0x80000000
    s_xor_b32 s3, s3, s56
    s_and_b32 s3, s3, 0xffff0000
    v_mov_b32 v98, s3
    v_mul_f32 v98, {fl(-1/math.log(2))}, v98
    v_exp_f32 v98, v98
    s_nop 0
    v_add_f32 v98, 1.0, v98
    v_rcp_f32 v98, v98
    s_nop 0''')
    g.rbf(98)
    for m in range(2):
        for tok in range(2):
            o = 64 * tok + 32 * m
            g(f'ds_write2_b32 v6, v{AC+8*m+tok}, v{AC+8*m+4+tok} offset0:{o} offset1:{o+1}')
    g('''s_waitcnt lgkmcnt(0)
    s_barrier
    ds_read2_b32 v[100:101], v94 offset0:0 offset1:32
    ds_read2_b32 v[102:103], v94 offset0:128 offset1:160
    ds_read2_b32 v[104:105], v95 offset0:0 offset1:32
    ds_read2_b32 v[106:107], v95 offset0:128 offset1:160
    v_lshrrev_b32 v6, 3, v8
    v_mul_u32_u24 v6, 4608, v6
    v_and_b32 v5, 7, v8
    v_lshl_add_u32 v6, v5, 2, v6
    s_lshl_b32 s3, s61, 5
    s_mul_i32 s56, s62, 73728
    s_add_u32 s56, s56, s3
    s_mul_i32 s57, s62, 9216
    s_add_u32 s57, s57, s3
    s_waitcnt lgkmcnt(0)
    v_add_f32 v100, v100, v102
    v_add_f32 v101, v101, v103
    v_add_f32 v104, v104, v106
    v_add_f32 v105, v105, v107
    v_add_f32 v100, v100, v104
    v_add_f32 v101, v101, v105''')
    g.rbf(100, 101)
    g(f'''v_mul_f32 v102, {fl(-1/math.log(2))}, v100
    v_exp_f32 v102, v102
    s_nop 0
    v_add_f32 v102, 1.0, v102
    v_rcp_f32 v102, v102
    s_nop 0
    v_mul_f32 v102, v102, v100''')
    g.rbf(102)
    g('''v_mul_f32 v102, v102, v101
    v_cvt_pk_bf16_f32 v102, v102, v102
    ds_write_b16 v4, v102 offset:8192
    s_waitcnt lgkmcnt(0)
    ds_read_b128 v[100:103], v3 offset:8192
    s_waitcnt lgkmcnt(0)''')
    for nt in range(9): g(f'v_mfma_f32_16x16x32_bf16 v[{10+4*nt}:{13+4*nt}], v[100:103], v[{BD+4*nt}:{BD+4*nt+3}], 0')
    g('s_mov_b64 exec, 0xffff\ns_nop 4')
    for nt in range(9):
        for tok in range(2):
            so = f's_add_u32 s3, s56, {4608*(72*tok+2*nt)}' if nt < 8 else f's_add_u32 s3, s57, {4608*(72*tok+64)}'
            g(f'{so}\nv_min_u32 v{10+4*nt+tok}, -2, v{10+4*nt+tok}\nbuffer_store_dword v{10+4*nt+tok}, v6, s[44:47], s3 offen sc1')
    g.stamp()
    g('''s_mov_b64 exec, -1
    s_cmp_lg_u32 s62, 0
    s_cbranch_scc1 K4_FIN
    v_lshlrev_b32 v3, 4, v7
    v_add_u32 v4, 0x1000, v3
    v_mov_b32 v5, 0x7fff0000
    v_cmp_lt_u32 vcc, 31, v7
    s_mul_i32 s3, s61, 4608
    v_cndmask_b32 v4, v4, v5, vcc
    v_cmp_lt_u32 vcc, 7, v7
    v_lshlrev_b32 v96, 16, v96
    v_cndmask_b32 v2, v2, v5, vcc
    v_lshlrev_b32 v97, 16, v97''')
    R = 46
    g.lab('MOE_P3')
    for i in range(5): g(f'buffer_load_dwordx4 v[{R+4*i}:{R+4*i+3}], v{3 if i<4 else 4}, s[44:47], s3 offen offset:{1024*(i&3)} sc1')
    g(f's_waitcnt vmcnt(0)\nv_max3_u32 v66, v{R}, v{R+1}, v{R+2}')
    for i in range(3, 19, 2): g(f'v_max3_u32 v66, v66, v{R+i}, v{R+i+1}')
    g(f'''v_max_u32 v66, v66, v{R+19}
    v_cmp_eq_u32 vcc, -1, v66
    s_cbranch_vccz MOE_G3
    s_sleep 2
    s_branch MOE_P3''')
    g.lab('MOE_G3')
    g.stamp()
    for i in range(1, 5):
        for k in range(4): g(f'v_add_f32 v{R+k}, v{R+k}, v{R+4*i+k}')
    for pm in ['quad_perm:[2,3,0,1]', 'row_ror:4', 'row_ror:8']:
        g('s_nop 0')
        for k in range(4): g(f'v_add_f32_dpp v{R+k}, v{R+k}, v{R+k} {pm} row_mask:0xf bank_mask:0xf')
    g(f'''v_and_b32 v5, 2, v7
    v_cmp_ne_u32 vcc, 0, v5
    v_and_b32 v5, 4, v7
    s_nop 0
    v_cndmask_b32 v{R}, v{R}, v{R+1}, vcc
    v_cndmask_b32 v{R+2}, v{R+2}, v{R+3}, vcc
    v_cmp_ne_u32 vcc, 0, v5
    v_xor_b32 v5, 32, v7
    v_lshlrev_b32 v5, 2, v5
    v_cndmask_b32 v{R}, v{R}, v{R+2}, vcc
    ds_swizzle_b32 v{R+1}, v{R} offset:0x401F
    s_waitcnt lgkmcnt(0)
    v_add_f32 v{R}, v{R}, v{R+1}
    ds_bpermute_b32 v{R+1}, v5, v{R}
    s_waitcnt lgkmcnt(0)
    v_add_f32 v{R}, v{R}, v{R+1}''')
    g.rbf(R)
    g(f'v_mul_f32 v{R}, v{R}, v98')
    g.rbf(R)
    g(f'v_add_f32 v{R}, v{R}, v97')
    g.rbf(R)
    g(f'v_add_f32 v{R}, v{R}, v96\nv_cvt_pk_bf16_f32 v{R}, v{R}, v{R}\nbuffer_store_short v{R}, v2, s[28:31], s54 offen sc1')
    g.lab('K4_FIN')
    g.stamp_out(2, 14)
    g.lab('K4_END')
    g('s_endpgm')
```

```python
from gen_common import *
NW4 = 144
def moe(g):
    g(f'''s_sub_u32 s61, s2, 256
    s_cmp_ge_u32 s61, {NW4}
    s_cbranch_scc1 K4_END
    s_load_dwordx4 s[4:7], s[0:1], 40
    s_load_dwordx4 s[8:11], s[0:1], 56
    s_load_dwordx4 s[12:15], s[0:1], 72''')
    slicemap(g, 60, 61, 3)
    g(f'''v_and_b32 v7, 63, v0
    v_lshrrev_b32 v6, 6, v0
    v_and_b32 v8, 15, v0
    v_readfirstlane_b32 s62, v6
    v_lshrrev_b32 v9, 4, v7
    v_mul_u32_u24 v3, 73728, v9
    v_lshl_add_u32 v3, v8, 2, v3
    s_lshl_b32 s3, s60, 6
    v_add_u32 v3, s3, v3
    s_cmp_ge_u32 s62, 2
    s_cselect_b32 s34, 0x7fff0000, 0
    v_add_u32 v5, s34, v3
    s_mul_i32 s63, s60, 36864
    s_add_u32 s35, s63, 4608
    v_mul_u32_u24 v4, 9216, v9
    s_lshl_b32 s3, s62, 5
    v_lshl_add_u32 v6, v8, 1, v4
    v_add_u32 v6, s3, v6
    v_add_u32 v6, 0x400, v6
    v_lshl_add_u32 v4, v8, 4, v4
    s_lshl_b32 s3, s62, 8
    v_add_u32 v4, s3, v4
    s_mul_i32 s34, s62, 294912
    s_mov_b32 s32, 0x05040100
    s_mov_b32 s33, 0x07060302
    s_waitcnt lgkmcnt(0)''')
    g.srd(16, 4, 576 * 9216); g.srd(20, 6, 576 * 9216); g.srd(24, 8, 4608 * 1152); g.srd(28, 10, 2048 * 1152)
    g.srd(36, 14, 8192, KEY_OFF); g.srd(40, 14, 2048 * 1152, H_OFF)
    g.srd(44, 14, 144 * 4608, P_OFF); g.srd(48, 14, 2048 * 8, STAT_OFF)
    g.stamp()
    GB, DR, DU, BD = 10, 94, 126, 134
    blk = lambda G, odd: GB + 4 + 8 * G + 4 * odd
    for i in range(5):
        for jj in range(8):
            g(f's_add_u32 s3, s34, {1179648*i+9216*jj}')
            for m in range(2): g(f'buffer_load_dword v{blk(2*i+m, jj&1)+jj//2}, v{5 if i==4 else 3}, s[{16+4*m}:{19+4*m}], s3 offen')
    for jj in range(8):
        g(f'buffer_load_dwordx4 v[{DR+4*jj}:{DR+4*jj+3}], v4, s[24:27], s{63 if jj<4 else 35} offen offset:{1152*(jj&3)}')
        g(f'buffer_load_ushort v{DU+jj}, v6, s[24:27], s{63 if jj<4 else 35} offen offset:{1152*(jj&3)}')
    OP = {}
    for i in range(5):
        g(f's_waitcnt vmcnt({min(63, 96-16*(i+1))})')
        for m in range(2):
            G_ = 2 * i + m
            X = GB if G_ == 0 else blk(G_ - 1, 0)
            A, B = blk(G_, 0), blk(G_, 1)
            for p in range(4): g(f'v_perm_b32 v{X+p}, v{B+p}, v{A+p}, s32\nv_perm_b32 v{B+p}, v{B+p}, v{A+p}, s33')
            OP[(i, m, 0)], OP[(i, m, 1)] = X, B
    g('s_waitcnt vmcnt(0)')
    g.stamp()
    for q in range(4):
        for e in range(2):
            for p in range(4): g(f'v_perm_b32 v{BD+4*(2*q+e)+p}, v{DR+8*p+4+q}, v{DR+8*p+q}, s{32+e}')
    for p in range(4): g(f'v_lshl_or_b32 v{BD+32+p}, v{DU+2*p+1}, 16, v{DU+2*p}')
    g('''v_and_b32 v1, 1, v7
    v_bfe_u32 v2, v7, 1, 2
    v_lshl_add_u32 v1, v1, 2, v2
    s_lshl_b32 s3, s61, 3
    s_cmp_ge_u32 s61, 72
    s_cselect_b32 s34, 576, 0
    s_cselect_b32 s35, 1536, 0
    s_cselect_b32 s63, 1, 0
    s_sub_u32 s3, s3, s34
    v_add_u32 v1, s3, v1
    v_and_b32 v2, 0x180, v1
    v_bfe_u32 v3, v1, 4, 3
    v_add_u32 v2, v2, v3
    v_and_b32 v3, 15, v1
    v_lshl_add_u32 v2, v3, 3, v2
    v_cmp_lt_u32 vcc, 0x1ff, v1
    s_nop 1
    v_cndmask_b32 v2, v2, v1, vcc
    v_lshlrev_b32 v2, 1, v2
    v_add_u32 v1, s35, v2''')
    g.stamp()
    KY = 170
    g('''s_cmp_lg_u32 s62, 0
    s_cbranch_scc1 MOE_WAIT
    v_lshlrev_b32 v3, 4, v7
    s_movk_i32 s3, 0x1000
    v_mov_b32 v208, 0
    s_mul_i32 s56, s61, 48''')
    g.lab('MOE_P1')
    g('''buffer_load_dword v202, v208, s[36:39], s56 offen sc1
    s_waitcnt vmcnt(0)
    v_cmp_eq_u32 vcc, 0, v202
    s_cbranch_vccz MOE_POLL
    s_sleep 6
    s_branch MOE_P1''')
    g.lab('MOE_POLL')
    for i in range(8): g(f'buffer_load_dwordx4 v[{KY+4*i}:{KY+4*i+3}], v3, s[36:39], {"s3" if i>=4 else "0"} offen offset:{1024*(i%4)} sc1')
    g(f's_waitcnt vmcnt(0)\nv_min3_u32 v202, v{KY}, v{KY+1}, v{KY+2}')
    for i in range(3, 31, 2): g(f'v_min3_u32 v202, v202, v{KY+i}, v{KY+i+1}')
    g(f'''v_min_u32 v202, v202, v{KY+31}
    v_cmp_eq_u32 vcc, 0, v202
    s_cbranch_vccz MOE_GO
    s_sleep 8
    s_branch MOE_POLL''')
    g.lab('MOE_GO')
    g(f'v_max_u32 v204, v{KY}, v{KY+1}\nv_min_u32 v205, v{KY}, v{KY+1}')
    for i in range(2, 32): g(f'v_med3_u32 v205, v204, v205, v{KY+i}\nv_max_u32 v204, v204, v{KY+i}')
    g('v_mov_b32 v206, v204')
    g.red64_to_s(206, 207, 52, 54)
    g('v_cmp_eq_u32 vcc, s52, v204\ns_nop 1\nv_cndmask_b32 v206, v204, v205, vcc')
    g.red64_to_s(206, 207, 53, 54)
    g('''s_andn2_b32 s56, 0xffff, s52
    s_andn2_b32 s57, 0xffff, s53
    s_lshl_b32 s56, s56, 3
    s_lshl_b32 s57, s57, 3
    v_mov_b32 v206, s52
    v_mov_b32 v207, s53
    ds_write_b64 v208, v[206:207] offset:4096''')
    g.lab('MOE_P2')
    g('''buffer_load_dwordx2 v[210:211], v208, s[48:51], s56 offen sc1
    buffer_load_dwordx2 v[212:213], v208, s[48:51], s57 offen sc1
    s_waitcnt vmcnt(0)
    v_and_b32 v214, v210, v212
    v_and_b32 v214, 1, v214
    v_and_b32 v210, 0xffff0000, v210
    v_and_b32 v212, 0xffff0000, v212
    v_cmp_eq_u32 vcc, 0, v214
    s_cbranch_vccz MOE_G2
    s_sleep 4
    s_branch MOE_P2''')
    g.lab('MOE_G2')
    g('ds_write_b128 v208, v[210:213] offset:4112\ns_waitcnt lgkmcnt(0)')
    g.lab('MOE_WAIT')
    g('''s_barrier
    v_mov_b32 v208, 0
    ds_read_b64 v[206:207], v208 offset:4096
    ds_read_b128 v[210:213], v208 offset:4112
    v_lshlrev_b32 v209, 1, v0
    s_waitcnt lgkmcnt(0)
    v_readfirstlane_b32 s52, v206
    v_readfirstlane_b32 s53, v207
    s_nop 3
    s_and_b32 s54, s52, 0xffff
    s_sub_u32 s54, 0xffff, s54
    s_and_b32 s55, s53, 0xffff
    s_sub_u32 s55, 0xffff, s55
    s_mul_i32 s54, s54, 1152
    s_mul_i32 s55, s55, 1152''')
    H = 214
    g('v_mov_b32 v3, 0x7fff0000\nv_cmp_lt_u32 vcc, 63, v0\ns_nop 1\nv_cndmask_b32 v3, v209, v3, vcc')
    for j in range(3):
        g(f'buffer_load_ushort v{H+2*j}, v{209 if j<2 else 3}, s[40:43], s54 offen offset:{512*j} sc1\nbuffer_load_ushort v{H+2*j+1}, v{209 if j<2 else 3}, s[40:43], s55 offen offset:{512*j} sc1')
    g.stamp()
    g('''v_and_b32 v3, 1, v8
    v_mul_u32_u24 v5, 1536, v3
    v_lshl_add_u32 v5, v9, 4, v5
    s_lshl_b32 s3, s62, 6
    v_add_u32 v5, s3, v5
    v_lshlrev_b32 v3, 6, v3
    v_lshl_add_u32 v3, v9, 4, v3
    s_lshl_b32 s3, s62, 7
    v_add_u32 v3, s3, v3
    v_lshl_add_u32 v4, v7, 1, s3
    s_lshl_b32 s3, s62, 9
    s_add_u32 s3, s3, 0x1000
    v_lshl_add_u32 v6, v8, 3, s3
    v_lshrrev_b32 v94, 5, v7
    v_and_b32 v95, 31, v7
    v_lshlrev_b32 v94, 8, v94
    v_lshl_add_u32 v94, v95, 2, v94
    v_add_u32 v94, 0x1000, v94
    v_add_u32 v95, 0x400, v94
    s_cmp_lg_u32 s63, 0
    s_cselect_b32 s52, s53, s52
    s_cselect_b32 s54, s55, s54
    s_waitcnt vmcnt(0)''')
    for j in range(3):
        a, b = H + 2 * j, H + 2 * j + 1
        c, d = a + 6, b + 6
        g(f'ds_write_b16 v209, v{a} offset:{12288+512*j}\nds_write_b16 v209, v{b} offset:{12288+1536+512*j}')
        g(f'v_lshlrev_b32 v{c}, 16, v{a}\nv_lshlrev_b32 v{d}, 16, v{b}\nv_sub_f32 v{c}, v{c}, v210\nv_sub_f32 v{d}, v{d}, v212')
        g.rbf(c, d)
        g(f'v_mul_f32 v{c}, v{c}, v211\nv_mul_f32 v{d}, v{d}, v213\nv_cvt_pk_bf16_f32 v{c}, v{c}, v{d}')
        g(f'ds_write_b16 v209, v{c} offset:{512*j}\nds_write_b16_d16_hi v209, v{c} offset:{1536+512*j}')
    g('s_waitcnt lgkmcnt(0)\ns_barrier')
    AA, AC = 170, 190
    for i in range(5): g(f'ds_read_b128 v[{AA+4*i}:{AA+4*i+3}], v5 offset:{256*i}')
    g('ds_read_u16 v96, v1 offset:12288\nds_read_u16 v97, v1')
    for i in range(5):
        g(f's_waitcnt lgkmcnt({6-i})')
        for m in range(2):
            for c in range(2):
                D = AC + 8 * m + 4 * c; B = OP[(i, m, c)]
                g(f'v_mfma_f32_16x16x32_bf16 v[{D}:{D+3}], v[{AA+4*i}:{AA+4*i+3}], v[{B}:{B+3}], ' + ('0' if i == 0 else f'v[{D}:{D+3}]'))
    g(f'''s_and_b32 s3, s52, 0xffff0000
    s_ashr_i32 s56, s3, 31
    s_not_b32 s56, s56
    s_or_b32 s56, s56, 0x80000000
    s_xor_b32 s3, s3, s56
    s_and_b32 s3, s3, 0xffff0000
    v_mov_b32 v98, s3
    v_mul_f32 v98, {fl(-1/math.log(2))}, v98
    v_exp_f32 v98, v98
    s_nop 0
    v_add_f32 v98, 1.0, v98
    v_rcp_f32 v98, v98
    s_nop 0''')
    g.rbf(98)
    for m in range(2):
        for tok in range(2):
            o = 64 * tok + 32 * m
            g(f'ds_write2_b32 v6, v{AC+8*m+tok}, v{AC+8*m+4+tok} offset0:{o} offset1:{o+1}')
    g('''s_waitcnt lgkmcnt(0)
    s_barrier
    ds_read2_b32 v[100:101], v94 offset0:0 offset1:32
    ds_read2_b32 v[102:103], v94 offset0:128 offset1:160
    ds_read2_b32 v[104:105], v95 offset0:0 offset1:32
    ds_read2_b32 v[106:107], v95 offset0:128 offset1:160
    v_lshrrev_b32 v6, 3, v8
    v_mul_u32_u24 v6, 4608, v6
    v_and_b32 v5, 7, v8
    v_lshl_add_u32 v6, v5, 2, v6
    s_lshl_b32 s3, s61, 5
    s_mul_i32 s56, s62, 73728
    s_add_u32 s56, s56, s3
    s_mul_i32 s57, s62, 9216
    s_add_u32 s57, s57, s3
    s_waitcnt lgkmcnt(0)
    v_add_f32 v100, v100, v102
    v_add_f32 v101, v101, v103
    v_add_f32 v104, v104, v106
    v_add_f32 v105, v105, v107
    v_add_f32 v100, v100, v104
    v_add_f32 v101, v101, v105''')
    g.rbf(100, 101)
    g(f'''v_mul_f32 v102, {fl(-1/math.log(2))}, v100
    v_exp_f32 v102, v102
    s_nop 0
    v_add_f32 v102, 1.0, v102
    v_rcp_f32 v102, v102
    s_nop 0
    v_mul_f32 v102, v102, v100''')
    g.rbf(102)
    g('''v_mul_f32 v102, v102, v101
    v_cvt_pk_bf16_f32 v102, v102, v102
    ds_write_b16 v4, v102 offset:8192
    s_waitcnt lgkmcnt(0)
    ds_read_b128 v[100:103], v3 offset:8192
    s_waitcnt lgkmcnt(0)''')
    for nt in range(9): g(f'v_mfma_f32_16x16x32_bf16 v[{10+4*nt}:{13+4*nt}], v[100:103], v[{BD+4*nt}:{BD+4*nt+3}], 0')
    g('s_mov_b64 exec, 0xffff\ns_nop 4')
    for nt in range(9):
        for tok in range(2):
            so = f's_add_u32 s3, s56, {4608*(72*tok+2*nt)}' if nt < 8 else f's_add_u32 s3, s57, {4608*(72*tok+64)}'
            g(f'{so}\nv_min_u32 v{10+4*nt+tok}, -2, v{10+4*nt+tok}\nbuffer_store_dword v{10+4*nt+tok}, v6, s[44:47], s3 offen sc1')
    g.stamp()
    g('''s_mov_b64 exec, -1
    s_cmp_lg_u32 s62, 0
    s_cbranch_scc1 K4_FIN
    v_lshlrev_b32 v3, 4, v7
    v_add_u32 v4, 0x1000, v3
    v_mov_b32 v5, 0x7fff0000
    v_cmp_lt_u32 vcc, 31, v7
    s_mul_i32 s3, s61, 4608
    v_cndmask_b32 v4, v4, v5, vcc
    v_cmp_lt_u32 vcc, 7, v7
    v_lshlrev_b32 v96, 16, v96
    v_cndmask_b32 v2, v2, v5, vcc
    v_lshlrev_b32 v97, 16, v97''')
    R = 46
    g.lab('MOE_P3')
    for i in range(5): g(f'buffer_load_dwordx4 v[{R+4*i}:{R+4*i+3}], v{3 if i<4 else 4}, s[44:47], s3 offen offset:{1024*(i&3)} sc1')
    g(f's_waitcnt vmcnt(0)\nv_max3_u32 v66, v{R}, v{R+1}, v{R+2}')
    for i in range(3, 19, 2): g(f'v_max3_u32 v66, v66, v{R+i}, v{R+i+1}')
    g(f'''v_max_u32 v66, v66, v{R+19}
    v_cmp_eq_u32 vcc, -1, v66
    s_cbranch_vccz MOE_G3
    s_sleep 2
    s_branch MOE_P3''')
    g.lab('MOE_G3')
    g.stamp()
    for i in range(1, 5):
        for k in range(4): g(f'v_add_f32 v{R+k}, v{R+k}, v{R+4*i+k}')
    for pm in ['quad_perm:[2,3,0,1]', 'row_ror:4', 'row_ror:8']:
        g('s_nop 0')
        for k in range(4): g(f'v_add_f32_dpp v{R+k}, v{R+k}, v{R+k} {pm} row_mask:0xf bank_mask:0xf')
    g(f'''v_and_b32 v5, 2, v7
    v_cmp_ne_u32 vcc, 0, v5
    v_and_b32 v5, 4, v7
    s_nop 0
    v_cndmask_b32 v{R}, v{R}, v{R+1}, vcc
    v_cndmask_b32 v{R+2}, v{R+2}, v{R+3}, vcc
    v_cmp_ne_u32 vcc, 0, v5
    v_xor_b32 v5, 32, v7
    v_lshlrev_b32 v5, 2, v5
    v_cndmask_b32 v{R}, v{R}, v{R+2}, vcc
    ds_swizzle_b32 v{R+1}, v{R} offset:0x401F
    s_waitcnt lgkmcnt(0)
    v_add_f32 v{R}, v{R}, v{R+1}
    ds_bpermute_b32 v{R+1}, v5, v{R}
    s_waitcnt lgkmcnt(0)
    v_add_f32 v{R}, v{R}, v{R+1}''')
    g.rbf(R)
    g(f'v_mul_f32 v{R}, v{R}, v98')
    g.rbf(R)
    g(f'v_add_f32 v{R}, v{R}, v97')
    g.rbf(R)
    g(f'v_add_f32 v{R}, v{R}, v96\nv_cvt_pk_bf16_f32 v{R}, v{R}, v{R}\nbuffer_store_short v{R}, v2, s[28:31], s54 offen sc1')
    g.lab('K4_FIN')
    g.stamp_out(2, 14)
    g.lab('K4_END')
    g('s_endpgm')
```
